```python
import torch

def _softmax(x, axis=-1):
    return torch.softmax(x, dim=axis)
def _gelu(x):
    return torch.nn.functional.gelu(x, approximate="tanh")
def _silu(x):
    return torch.nn.functional.silu(x)
def _sigmoid(x):
    return torch.sigmoid(x)
def _layernorm(x, axis=-1, eps=1e-5):
    m = x.mean(dim=axis, keepdim=True)
    v = x.var(dim=axis, keepdim=True, unbiased=False)
    return (x - m) / torch.sqrt(v + eps)
def _scatter_add(tgt, idx, src, axis=0):
    return tgt.clone().index_add_(axis, idx, src)
def _segment_sum(src, seg, n):
    out = torch.zeros((n,) + src.shape[1:], dtype=src.dtype)
    return out.index_add_(0, seg, src)
def _pad(x, pw):
    flat = tuple(v for pair in reversed(pw) for v in pair)
    return torch.nn.functional.pad(x, flat)

kernel_name = 'parallel_sum__sliding_block_cached__mixer_channel_mlp__decode'

def setup_inputs():

    _w = (lambda a: (lambda t: t.to(torch.bfloat16) if t.is_floating_point() else t)(torch.as_tensor(a)))
    def _A_setup():
        B, Sq, D = 1, 1, 448
        Hq, Hkv, Sk, Dh = 16, 8, 8192, 256
        assert Hq % Hkv == 0, (Hq, Hkv)
        return {
            "x": _w((lambda *s: torch.randn(*s, dtype=torch.bfloat16) * 0.05)(B, Sq, D)),
            "k_cache": _w((lambda *s: torch.randn(*s, dtype=torch.bfloat16) * 3.2)(B, Hkv, Sk, Dh)),
            "v_cache": _w((lambda *s: torch.randn(*s, dtype=torch.bfloat16) * 0.4)(B, Hkv, Sk, Dh)),
            "wq": _w((lambda *s: torch.randn(*s, dtype=torch.bfloat16) * 3.2)(D, Hq * Dh) * (D ** -0.5)),
            "wo": _w((lambda *s: torch.randn(*s, dtype=torch.bfloat16) * 0.4)(Hq * Dh, D) * ((Hq * Dh) ** -0.5)),
        }
    _A_in = _A_setup()

    def _B_setup():
        B, S, D, F = 1, 1, 448, 1792
        return {
            "x": _w((lambda *s: torch.randn(*s, dtype=torch.bfloat16) * 0.05)(B, S, D)),
            "w1": _w((lambda *s: torch.randn(*s, dtype=torch.bfloat16) * 3.2)(D, F) * (D ** -0.5)),
            "b1": _w((lambda *s: torch.randn(*s, dtype=torch.bfloat16) * 1.6)(F)),
            "w2": _w((lambda *s: torch.randn(*s, dtype=torch.bfloat16) * 0.05)(F, D) * (F ** -0.5)),
            "b2": _w((lambda *s: torch.randn(*s, dtype=torch.bfloat16) * 0.05)(D)),
        }
    _B_in = _B_setup()

    return {
        "A_x": _A_in["x"],
        "A_k_cache": _A_in["k_cache"],
        "A_v_cache": _A_in["v_cache"],
        "A_wq": _A_in["wq"],
        "A_wo": _A_in["wo"],
        "B_x": _B_in["x"],
        "B_w1": _B_in["w1"],
        "B_b1": _B_in["b1"],
        "B_w2": _B_in["w2"],
        "B_b2": _B_in["b2"],
    }

def reference(A_x, A_k_cache, A_v_cache, A_wq, A_wo, B_x, B_w1, B_b1, B_w2, B_b2):
    def _A_ref(x, k_cache, v_cache, wq, wo):
        B, Sq, D = x.shape
        Hq, Dh = 16, 256
        Hkv, Sk = k_cache.shape[1], k_cache.shape[2]
        W = min(4096, max(256, Sk // 4))
        rep = Hq // Hkv
        q = (lambda x, *d: x.permute(*d))((x @ wq).reshape(B, Sq, Hq, Dh), 0, 2, 1, 3)
        k = (lambda x, n, axis: torch.repeat_interleave(x, n, dim=axis))(k_cache[:, :, Sk - W:, :], rep, axis=1)
        v = (lambda x, n, axis: torch.repeat_interleave(x, n, dim=axis))(v_cache[:, :, Sk - W:, :], rep, axis=1)
        scores = torch.einsum("bhqd,bhkd->bhqk", q, k) * (Dh ** -0.5)
        p = _softmax(scores, axis=-1)
        o = torch.einsum("bhqk,bhkd->bhqd", p, v)
        return (lambda x, *d: x.permute(*d))(o, 0, 2, 1, 3).reshape(B, Sq, Hq * Dh) @ wo

    def _B_ref(x, w1, b1, w2, b2):
        y = _layernorm(x, axis=-1)
        h = _gelu(torch.einsum("bsd,df->bsf", y, w1) + b1)
        return torch.einsum("bsf,fd->bsd", h, w2) + b2

    x = A_x
    xn = _layernorm(x, axis=-1)
    return x + _A_ref(xn, A_k_cache, A_v_cache, A_wq, A_wo) + _B_ref(xn, B_w1, B_b1, B_w2, B_b2)
```

```python
NAME = "parallel_sum__sliding_block_cached__mixer_channel_mlp__decode"
HEADER = """; Kernarg layout for this problem (104 bytes, ptrs only, base s[0:1]):
"""
def wrap(body, grid, block, lds, vgpr=256, sgpr=102, accum=None):
    if accum is None:
        accum = min(256, (vgpr + 3) // 4 * 4)
    return HEADER + f"""; @launch grid=({grid},1,1) block=({block},1,1) lds={lds}
.amdgcn_target "amdgcn-amd-amdhsa--gfx950"
.text
.globl {NAME}_kernel
.p2align 8
.type {NAME}_kernel,@function
{NAME}_kernel:
{body}
s_endpgm
.section .rodata,"a"
.p2align 6
.amdhsa_kernel {NAME}_kernel
  .amdhsa_next_free_vgpr {vgpr}
  .amdhsa_next_free_sgpr {sgpr}
  .amdhsa_accum_offset {accum}
  .amdhsa_group_segment_fixed_size 0
  .amdhsa_kernarg_size 104
  .amdhsa_user_sgpr_count 2
  .amdhsa_user_sgpr_kernarg_segment_ptr 1
  .amdhsa_system_sgpr_workgroup_id_x 1
.end_amdhsa_kernel
"""
```

```python
import re

TRANS = ("v_exp_f32", "v_log_f32", "v_rcp_f32", "v_rsq_f32", "v_sqrt_f32", "v_sin_f32", "v_cos_f32")

def split_ops(s):
    out, depth, cur = [], 0, ""
    for ch in s:
        if ch == "[": depth += 1
        if ch == "]": depth -= 1
        if ch == "," and depth == 0:
            out.append(cur.strip()); cur = ""
        else:
            cur += ch
    if cur.strip(): out.append(cur.strip())
    return out

def regs_of(tok):
    tok = tok.strip()
    tok = tok.split(" ")[0]
    tok = tok.lstrip("-")
    m = re.match(r"^abs\((.*)\)$", tok)
    if m: tok = m.group(1)
    m = re.match(r"^\|(.*)\|$", tok)
    if m: tok = m.group(1)
    if tok == "vcc": return {("s", 106), ("s", 107)}
    if tok == "vcc_lo": return {("s", 106)}
    if tok == "vcc_hi": return {("s", 107)}
    if tok == "exec": return {("s", 126), ("s", 127)}
    m = re.match(r"^([vsa])(\d+)$", tok)
    if m: return {(m.group(1), int(m.group(2)))}
    m = re.match(r"^([vsa])\[(\d+):(\d+)\]$", tok)
    if m: return {(m.group(1), i) for i in range(int(m.group(2)), int(m.group(3)) + 1)}
    return set()

class Ins:
    pass

class Asm:
    def __init__(self):
        self.lines = []
        self.hist = []
        self.nlabel = 0

    def newlabel(self, base="L"):
        self.nlabel += 1
        return f"{base}_{self.nlabel}"

    def label(self, name):
        self.lines.append(f"{name}:")

    def comment(self, c):
        self.lines.append(f"    ; {c}")

    def analyze(self, text):
        t = text.strip()
        parts = t.split(None, 1)
        mn = parts[0]
        rest = parts[1] if len(parts) > 1 else ""
        ops = split_ops(rest)
        I = Ins(); I.mn = mn; I.text = t
        I.reads = set(); I.writes = set()
        I.valu = mn.startswith("v_") and not mn.startswith("v_mfma")
        I.mfma = mn.startswith("v_mfma")
        I.dpp = ("_dpp" in mn) or any(k in rest for k in ("quad_perm", "row_shl", "row_shr", "row_ror", "row_bcast", "row_mirror", "row_half_mirror", "row_newbcast"))
        I.trans = any(mn.startswith(x) for x in TRANS)
        I.dot = mn.startswith("v_dot")
        I.perml = mn.startswith("v_permlane")
        I.rdlane = mn.startswith("v_readlane") or mn.startswith("v_readfirstlane")
        I.vmem = mn.startswith(("global_", "buffer_", "flat_"))
        I.ds = mn.startswith("ds_")
        I.salu = mn.startswith("s_")
        I.widestore = I.vmem and ("store" in mn) and ("x4" in mn or "x3" in mn)
        I.slots = 1
        if mn == "s_nop": I.slots = int(ops[0]) + 1
        R = [regs_of(o) for o in ops]
        if I.valu or I.mfma:
            if I.perml:
                I.reads |= R[0] | R[1]; I.writes |= R[0] | R[1]
            else:
                I.writes |= R[0]
                k = 1
                if mn.startswith(("v_add_co", "v_sub_co", "v_addc_co", "v_subb_co", "v_div_scale", "v_mad_u64")):
                    I.writes |= R[1]; k = 2
                for r in R[k:]: I.reads |= r
                if mn.startswith(("v_fmac", "v_dot2c", "v_mac", "v_writelane")) or I.dpp:
                    I.reads |= R[0]
                if mn.startswith("v_cndmask") and len(ops) == 3:
                    I.reads |= regs_of("vcc")
            if I.mfma:
                I.srcc = R[3] if len(R) > 3 else set()
                I.srcab = R[1] | R[2]
        elif I.vmem or I.ds:
            isload = ("load" in mn or "read" in mn or "bpermute" in mn or "swizzle" in mn or "_rtn" in mn) and "lds" not in rest.split()
            if isload:
                I.ldst = R[0]
                for r in R[1:]: I.reads |= r
            else:
                I.ldst = set()
                for r in R: I.reads |= r
            if I.widestore:
                I.sdata = R[1] if mn.startswith("global_") else R[0]
        else:
            if not mn.startswith(("s_cmp", "s_cbranch", "s_branch", "s_waitcnt", "s_nop", "s_barrier", "s_endpgm", "s_sleep", "s_setprio", "s_bitcmp")):
                if R: I.writes |= R[0]
                for r in R[1:]: I.reads |= r
            else:
                for r in R: I.reads |= r
        return I

    def need(self, P, C):
        n = 0
        pv = {r for r in P.writes if r[0] in "va"}
        ps = {r for r in P.writes if r[0] == "s"}
        cr = C.reads
        cw = C.writes | getattr(C, "ldst", set())
        if P.valu:
            if pv & cr:
                if C.dpp: n = max(n, 2)
                if C.rdlane: n = max(n, 1)
                if C.mfma: n = max(n, 2)
                if C.perml: n = max(n, 2)
                if P.trans and not C.trans: n = max(n, 1)
            if P.dot and (pv & (cr | cw)):
                if C.mn == P.mn:
                    ops = split_ops(C.text.split(None, 1)[1])
                    ab = regs_of(ops[1]) | regs_of(ops[2])
                    if pv & ab: n = max(n, 3)
                else:
                    n = max(n, 3)
            if ps & cr:
                if C.valu or C.mfma: n = max(n, 4 if C.rdlane else 2)
                if C.vmem: n = max(n, 5)
                if C.salu: n = max(n, 1)
            if ps & {("s", 126), ("s", 127)}:
                if C.dpp: n = max(n, 5)
                if C.mfma or C.rdlane or C.perml: n = max(n, 4)
        if P.mfma:
            passes = 8 if "32x32" in P.mn else 4
            tab = {4: 8, 8: 12}[passes]
            if C.mfma:
                if pv & C.srcab: n = max(n, tab)
                if (pv & C.srcc) and C.srcc != pv: n = max(n, tab - 2)
            elif pv & (cr | cw):
                n = max(n, tab)
            if C.valu and (P.srcc & C.writes): n = max(n, {4: 3, 8: 7}[passes])
        if P.widestore and (P.sdata & cw): n = max(n, 2)
        return n

    def __call__(self, text):
        for t in text.strip().split("\n"):
            t = t.split(";")[0].strip()
            if not t: continue
            if t.endswith(":"):
                self.label(t[:-1]); continue
            I = self.analyze(t)
            dist = 0; pad = 0
            for P in reversed(self.hist):
                req = self.need(P, I)
                if req > dist: pad = max(pad, req - dist)
                dist += P.slots
                if dist > 20: break
            if pad:
                N = Ins(); N = self.analyze(f"s_nop {pad-1}")
                self.lines.append(f"    s_nop {pad-1}")
                self.hist.append(N)
            self.lines.append("    " + t)
            self.hist.append(I)
            if len(self.hist) > 40: self.hist = self.hist[-30:]

    def fence(self, n=5):
        self(f"s_nop {n-1}")

    def text(self):
        return "\n".join(self.lines)
```

```python
import sys, math
sys.path.insert(0, "gen"); sys.path.insert(0, "exp")
from asmlib import Asm
from gen_common import wrap

PROFILE = "--prof" in sys.argv
OUT = [x for x in sys.argv[1:] if not x.startswith("--")][0]

WS_Q   = 0x1000
WS_RDY = 0x8000
WS_S   = 0x9000
WS_O   = 0x10000
WS_F   = 0x100000
WS_PROF = 0x8000000
QS = 0x000; QHS = 640
ZR = 0x500
SMAX = 0x700; LSUM = 0x740
OPAIR = 0x780
XB = 0x800
HB = 0xB80
PART = 0xC00
OB = 0x1400
LDS_BYTES = 0x4C00

CEXP = 0.0625 * math.log2(math.e)
def f2u(f):
    import struct
    return struct.unpack("<I", struct.pack("<f", f))[0]

a = Asm()
nst = [0]
def stamp(k):
    if PROFILE:
        a(f"s_memrealtime s[{64+2*k}:{65+2*k}]")

def addr(dst, base, lines_off_reg=None, imm=0):
    pass

def base_add(dst, src, offs):
    a(f"s_add_u32 s{dst}, s{src}, {offs}")
    a(f"s_addc_u32 s{dst+1}, s{src+1}, 0")

def barrier():
    a("s_waitcnt lgkmcnt(0)")
    a("s_barrier")

def spin_guard(loop, done):
    a("s_add_u32 s44, s44, 1")
    a("s_cmp_gt_u32 s44, 0x40000")
    a(f"s_cbranch_scc1 {done}")
    a(f"s_branch {loop}")

def preperm(src_a, src_b, dst, n=4):
    for k in range(n):
        a(f"v_perm_b32 v{dst+2*k}, v{src_b+k}, v{src_a+k}, s32")
        a(f"v_perm_b32 v{dst+2*k+1}, v{src_b+k}, v{src_a+k}, s33")

def dots(acc, pp, coef, n=8, first=False):
    for k in range(n):
        c = "0" if first else f"v{acc+k}"
        a(f"v_dot2_f32_bf16 v{acc+k}, v{pp+k}, {coef}, {c}")

def reduce_hi(acc, extra_ror):
    for k in range(4):
        a(f"v_permlane32_swap_b32 v{acc+k}, v{acc+k+4}")
    for k in range(4):
        a(f"v_add_f32 v{acc+k}, v{acc+k}, v{acc+k+4}")
    for k in range(2):
        a(f"v_permlane16_swap_b32 v{acc+k}, v{acc+k+2}")
    for k in range(2):
        a(f"v_add_f32 v{acc+k}, v{acc+k}, v{acc+k+2}")
    for r in extra_ror:
        for k in range(2):
            a(f"v_add_f32_dpp v{acc+k}, v{acc+k}, v{acc+k} row_ror:{r} row_mask:0xf bank_mask:0xf")

def dpp_red16(op, regs, last_bcast=True):
    for pat in ["quad_perm:[1,0,3,2]", "quad_perm:[2,3,0,1]", "row_half_mirror", "row_mirror"]:
        for (d, s) in regs:
            a(f"{op}_dpp v{d}, v{s}, v{s} {pat} row_mask:0xf bank_mask:0xf")
        regs = [(d, d) for (d, s) in regs]
    if last_bcast:
        for (d, s) in regs:
            a(f"{op}_dpp v{d}, v{d}, v{d} row_bcast:15 row_mask:0x2 bank_mask:0xf")

def wave_sum_to_sgpr(v, sdst):
    dpp_red16("v_add_f32", [(v, v)], last_bcast=False)
    a(f"v_add_f32_dpp v{v}, v{v}, v{v} row_bcast:15 row_mask:0xa bank_mask:0xf")
    a(f"v_add_f32_dpp v{v}, v{v}, v{v} row_bcast:31 row_mask:0xc bank_mask:0xf")
    a(f"v_readlane_b32 s{sdst}, v{v}, 63")

def layernorm(pk, f, t):
    for k in range(4):
        a(f"v_lshlrev_b32 v{f+2*k}, 16, v{pk+k}")
        a(f"v_and_b32 v{f+2*k+1}, 0xffff0000, v{pk+k}")
    a(f"v_add_f32 v{t}, v{f}, v{f+1}")
    a(f"v_add_f32 v{t+1}, v{f+2}, v{f+3}")
    a(f"v_add_f32 v{t+2}, v{f+4}, v{f+5}")
    a(f"v_add_f32 v{t+3}, v{f+6}, v{f+7}")
    a(f"v_add_f32 v{t}, v{t}, v{t+1}")
    a(f"v_add_f32 v{t+2}, v{t+2}, v{t+3}")
    a(f"v_add_f32 v{t}, v{t}, v{t+2}")
    wave_sum_to_sgpr(t, 35)
    a(f"v_mov_b32 v{t+1}, {hex(f2u(1.0/448))}")
    a(f"v_mul_f32 v{t+2}, s35, v{t+1}")
    a(f"v_mov_b32 v{t}, 0")
    a("s_mov_b32 exec_hi, 0x00ffffff")
    for k in range(8):
        a(f"v_sub_f32 v{t+3}, v{f+k}, v{t+2}")
        a(f"v_fmac_f32 v{t}, v{t+3}, v{t+3}")
    a("s_mov_b32 exec_hi, -1")
    wave_sum_to_sgpr(t, 35)
    a(f"v_mul_f32 v{t+3}, s35, v{t+1}")
    a(f"v_cvt_pk_bf16_f32 v{t+4}, v{t+2}, v{t+3}")
    a(f"v_lshlrev_b32 v{t+2}, 16, v{t+4}")
    a(f"v_and_b32 v{t+3}, 0xffff0000, v{t+4}")
    a(f"v_add_f32 v{t+3}, {hex(f2u(1e-5))}, v{t+3}")
    a(f"v_cvt_pk_bf16_f32 v{t+3}, v{t+3}, v{t+3}")
    a(f"v_lshlrev_b32 v{t+3}, 16, v{t+3}")
    a(f"v_sqrt_f32 v{t+3}, v{t+3}")
    a(f"v_cvt_pk_bf16_f32 v{t+3}, v{t+3}, v{t+3}")
    a(f"v_lshlrev_b32 v{t+3}, 16, v{t+3}")
    a(f"v_rcp_f32 v{t+4}, v{t+3}")
    for k in range(8):
        a(f"v_sub_f32 v{f+k}, v{f+k}, v{t+2}")
    for k in range(4):
        a(f"v_cvt_pk_bf16_f32 v{pk+k}, v{f+2*k}, v{f+2*k+1}")
    for k in range(4):
        a(f"v_lshlrev_b32 v{f+2*k}, 16, v{pk+k}")
        a(f"v_and_b32 v{f+2*k+1}, 0xffff0000, v{pk+k}")
    for k in range(8):
        a(f"v_mul_f32 v{t}, v{f+k}, v{t+4}")
        a(f"v_fma_f32 v{t+1}, -v{t}, v{t+3}, v{f+k}")
        a(f"v_fma_f32 v{f+k}, v{t+1}, v{t+4}, v{t}")
    for k in range(4):
        a(f"v_cvt_pk_bf16_f32 v{pk+k}, v{f+2*k}, v{f+2*k+1}")
    a("s_mov_b32 exec_lo, 0")
    a("s_mov_b32 exec_hi, 0xff000000")
    for k in range(4):
        a(f"v_mov_b32 v{pk+k}, 0")
    a("s_mov_b64 exec, -1")

stamp(0)
a("s_cmp_ge_u32 s2, 256")
a("s_cbranch_scc1 L_end")
a("s_load_dwordx16 s[4:19], s[0:1], 0")
a("s_load_dwordx8 s[20:27], s[0:1], 64")
a("s_load_dwordx2 s[28:29], s[0:1], 96")
a("v_lshrrev_b32 v1, 6, v0")
a("v_and_b32 v0, 63, v0")
a("v_readfirstlane_b32 s3, v1")
a("s_and_b32 s30, s2, 7")
a("s_lshr_b32 s31, s2, 3")
a("s_mov_b32 s32, 0x05040100")
a("s_mov_b32 s33, 0x07060302")
a("s_mov_b32 s44, 0")
if PROFILE:
    for k in range(1, 8): a(f"s_mov_b32 s{64+2*k}, 0")
a("s_cmp_eq_u32 s3, 7")
a("s_cbranch_scc1 L_service")
a("s_cmp_lt_u32 s31, 16")
a("s_cbranch_scc1 L_X")
a("s_cmp_lt_u32 s31, 24")
a("s_cbranch_scc1 L_Yq")
a("s_cmp_lt_u32 s31, 31")
a("s_cbranch_scc1 L_Ym")
a("s_branch L_Ys")

def tile_bases():
    a("s_lshl_b32 s35, s35, 13")
    a("s_lshl_b32 s45, s30, 22")
    a("s_add_u32 s35, s35, s45")
    a("s_add_u32 s35, s35, 0x300000")
    base_add(36, 6, "s35")
    base_add(38, 36, 4096)
    base_add(40, 8, "s35")
    base_add(42, 40, 4096)

def k_loads():
    a("v_and_b32 v2, 7, v0")
    a("v_lshlrev_b32 v2, 9, v2")
    a("v_lshrrev_b32 v3, 3, v0")
    a("v_lshl_add_u32 v2, v3, 4, v2")
    for oct in range(2):
        for ls in range(4):
            r = 32 + (oct * 4 + ls) * 4
            a(f"global_load_dwordx4 v[{r}:{r+3}], v2, s[{36+2*oct}:{37+2*oct}] offset:{ls*128} nt")

def tile_pre():
    a("v_lshlrev_b32 v3, 3, v0")
    a("v_and_b32 v6, 1, v0")
    a(f"v_mul_u32_u24 v6, {QHS}, v6")
    a("v_lshrrev_b32 v7, 4, v0")
    a("v_lshlrev_b32 v7, 5, v7")
    a("v_bfe_u32 v8, v0, 1, 1")
    a("v_lshl_add_u32 v7, v8, 4, v7")
    a(f"v_add_u32 v6, v6, v7")
    a(f"v_add_u32 v7, {ZR}, v7")
    a("v_bfe_u32 v8, v0, 2, 2")
    a("v_cmp_eq_u32 vcc, 0, v8")
    a("v_cndmask_b32 v4, v7, v6, vcc")
    a("v_cmp_eq_u32 vcc, 1, v8")
    a("v_cndmask_b32 v5, v7, v6, vcc")
    a("v_mov_b32 v15, 0xff800000")
    a("s_mov_b32 s46, 0x00ff00ff")
    a("s_mov_b32 s47, 0")
    a("s_lshl_b32 s35, s3, 2")
    a("v_mov_b32 v28, s35")
    a("v_mov_b32 v29, 0")
    a("s_lshl_b32 s35, s3, 11")
    a("v_lshl_add_u32 v30, v0, 4, s35")

def tile_scores(k_outstanding_after):
    for r in range(16):
        b = 40 if r < 8 else 42
        a(f"global_load_dwordx2 v[{64+2*r}:{65+2*r}], v3, s[{b}:{b+1}] offset:{(r%8)*512} nt")
    for oct in range(2):
        for ls in range(4):
            r = 96 + (oct * 4 + ls) * 4
            a(f"ds_read_b128 v[{r}:{r+3}], v{4+oct} offset:{ls*128}")
    a("s_waitcnt vmcnt(16) lgkmcnt(0)")
    stamp(2)
    first = True
    for oct in range(2):
        for ls in range(4):
            ra = 96 + (oct * 4 + ls) * 4; rb = 32 + (oct * 4 + ls) * 4
            a(f"v_mfma_f32_16x16x32_bf16 v[8:11], v[{ra}:{ra+3}], v[{rb}:{rb+3}], {'0' if first else 'v[8:11]'}")
            first = False
    a("v_add_f32_dpp v12, v10, v8 row_ror:8 row_mask:0xf bank_mask:0xf")
    a("v_add_f32_dpp v13, v11, v9 row_ror:8 row_mask:0xf bank_mask:0xf")
    a("v_cvt_pk_bf16_f32 v14, v12, v13")
    a("v_lshlrev_b32 v12, 16, v14")
    a("v_and_b32 v13, 0xffff0000, v14")
    a("v_cndmask_b32 v12, v15, v12, s[46:47]")
    a("v_cndmask_b32 v13, v15, v13, s[46:47]")
    dpp_red16("v_max_f32", [(16, 12), (17, 13)])
    a("s_mov_b64 exec, 0x10000")
    a(f"ds_write2_b32 v28, v16, v17 offset0:{SMAX//4} offset1:{SMAX//4+8}" if SMAX // 4 + 8 < 256 else "")
    a("s_mov_b64 exec, -1")

def lds_w2(vaddr, r0, r1, off, stride):
    a(f"ds_write_b32 v{vaddr}, v{r0} offset:{off}")
    a(f"ds_write_b32 v{vaddr}, v{r1} offset:{off+stride}")

def tile_scores2():
    for r in range(16):
        b = 40 if r < 8 else 42
        a(f"global_load_dwordx2 v[{64+2*r}:{65+2*r}], v3, s[{b}:{b+1}] offset:{(r%8)*512} nt")
    for oct in range(2):
        for ls in range(4):
            r = 96 + (oct * 4 + ls) * 4
            a(f"ds_read_b128 v[{r}:{r+3}], v{4+oct} offset:{ls*128}")
    a("s_waitcnt vmcnt(16) lgkmcnt(0)")
    stamp(2)
    first = True
    for oct in range(2):
        for ls in range(4):
            ra = 96 + (oct * 4 + ls) * 4; rb = 32 + (oct * 4 + ls) * 4
            a(f"v_mfma_f32_16x16x32_bf16 v[8:11], v[{ra}:{ra+3}], v[{rb}:{rb+3}], {'0' if first else 'v[8:11]'}")
            first = False
    a("v_add_f32_dpp v12, v10, v8 row_ror:8 row_mask:0xf bank_mask:0xf")
    a("v_add_f32_dpp v13, v11, v9 row_ror:8 row_mask:0xf bank_mask:0xf")
    a("v_cvt_pk_bf16_f32 v14, v12, v13")
    a("v_lshlrev_b32 v12, 16, v14")
    a("v_and_b32 v13, 0xffff0000, v14")
    a("v_cndmask_b32 v12, v15, v12, s[46:47]")
    a("v_cndmask_b32 v13, v15, v13, s[46:47]")
    dpp_red16("v_max_f32", [(16, 12), (17, 13)])
    a("s_mov_b64 exec, 0x10000")
    lds_w2(28, 16, 17, SMAX, 32)
    a("s_mov_b64 exec, -1")

def tile_pv(extra_vm):
    for k in range(4):
        a(f"ds_read_b128 v[{112+4*k}:{115+4*k}], v29 offset:{SMAX+16*k}")
    a("s_waitcnt lgkmcnt(0)")
    for h in range(2):
        b = 112 + 8 * h
        a(f"v_max3_f32 v{b}, v{b}, v{b+1}, v{b+2}")
        a(f"v_max3_f32 v{b+3}, v{b+3}, v{b+4}, v{b+5}")
        a(f"v_max3_f32 v{b}, v{b}, v{b+6}, v{b+7}")
        a(f"v_max_f32 v{b}, v{b}, v{b+3}")
    a("v_sub_f32 v12, v12, v112")
    a("v_sub_f32 v13, v13, v120")
    a(f"v_mul_f32 v12, {hex(f2u(CEXP))}, v12")
    a(f"v_mul_f32 v13, {hex(f2u(CEXP))}, v13")
    a("v_exp_f32 v12, v12")
    a("v_exp_f32 v13, v13")
    a("v_mov_b32_dpp v18, v12 quad_perm:[1,0,3,2] row_mask:0xf bank_mask:0xf")
    a("v_mov_b32_dpp v19, v13 quad_perm:[1,0,3,2] row_mask:0xf bank_mask:0xf")
    a("v_cvt_pk_bf16_f32 v18, v12, v18")
    a("v_cvt_pk_bf16_f32 v19, v13, v19")
    for k in range(8):
        ln = 2 * k if k < 4 else 16 + 2 * (k - 4)
        a(f"v_readlane_b32 s{48+k}, v18, {ln}")
        a(f"v_readlane_b32 s{56+k}, v19, {ln}")
    dpp_red16("v_add_f32", [(16, 12), (17, 13)])
    a("s_mov_b64 exec, 0x10000")
    lds_w2(28, 16, 17, LSUM, 32)
    a("s_mov_b64 exec, -1")
    stamp(3)
    for k in range(8):
        a(f"s_waitcnt vmcnt({14-2*k+extra_vm})")
        ra = 64 + 4 * k; rb = ra + 2
        t = 112 + 4 * (k & 1)
        preperm(ra, rb, t, n=2)
        dots(20, t, f"s{48+k}", n=4, first=(k == 0))
        dots(24, t, f"s{56+k}", n=4, first=(k == 0))
    stamp(4)
    a(f"ds_write_b128 v30, v[20:23] offset:{OB}")
    a(f"ds_write_b128 v30, v[24:27] offset:{OB+1024}")

def combine(nt):
    a("s_lshl_b32 s35, s3, 8")
    a("v_lshl_add_u32 v2, v0, 2, s35")
    a(f"v_add_u32 v3, {OB}, v2")
    n2 = (nt + 1) // 2
    for k in range(n2):
        if 2 * k + 1 < nt:
            a(f"ds_read2st64_b32 v[{8+2*k}:{9+2*k}], v3 offset0:{16*k} offset1:{16*k+8}")
        else:
            a(f"ds_read_b32 v{8+2*k}, v3 offset:{2048*2*k}")
    a("s_lshl_b32 s35, s30, 16")
    a("s_lshl_b32 s45, s31, 11")
    a("s_add_u32 s35, s35, s45")
    a(f"s_add_u32 s35, s35, {WS_O}")
    base_add(36, 28, "s35")
    a("s_waitcnt lgkmcnt(0)")
    vals = list(range(8, 8 + nt))
    while len(vals) > 1:
        nxt = []
        for k in range(0, len(vals) - 1, 2):
            a(f"v_add_f32 v{vals[k]}, v{vals[k]}, v{vals[k+1]}")
            nxt.append(vals[k])
        if len(vals) % 2: nxt.append(vals[-1])
        vals = nxt
    a("v_min_u32 v8, -2, v8")
    a("global_store_dword v2, v8, s[36:37] sc1")

def gemv_loads(ptr, row_sgpr, dst):
    a(f"s_mul_i32 s35, {row_sgpr}, 896")
    a("s_lshl_b32 s45, s3, 7")
    a("s_add_u32 s35, s35, s45")
    base_add(38, ptr, "s35")
    a("v_lshrrev_b32 v6, 3, v0")
    a("v_mul_u32_u24 v6, 3584, v6")
    a("v_and_b32 v7, 7, v0")
    a("v_lshl_add_u32 v6, v7, 4, v6")
    for i in range(4):
        a(f"global_load_dwordx4 v[{dst+4*i}:{dst+4*i+3}], v6, s[38:39] offset:{896*i} nt")

def publish_final(acc):
    a("s_lshl_b32 s35, s30, 4")
    a("s_add_u32 s35, s35, s31")
    a("s_sub_u32 s35, s35, 16")
    a("s_lshl_b32 s35, s35, 5")
    a("s_lshl_b32 s45, s3, 15")
    a("s_add_u32 s35, s35, s45")
    a(f"s_add_u32 s35, s35, {WS_F}")
    base_add(36, 28, "s35")
    a("v_and_b32 v6, 7, v0")
    a("v_lshlrev_b32 v6, 12, v6")
    a("v_lshrrev_b32 v7, 4, v0")
    a("v_lshl_add_u32 v6, v7, 3, v6")

def publish_final_store(acc):
    a(f"v_min_u32 v{acc}, -2, v{acc}")
    a(f"v_min_u32 v{acc+1}, -2, v{acc+1}")
    a("s_mov_b32 exec_lo, 0x00ff00ff")
    a("s_mov_b32 exec_hi, 0x00ff00ff")
    a(f"global_store_dwordx2 v6, v[{acc}:{acc+1}], s[36:37] sc1")
    a("s_mov_b64 exec, -1")

def wo_rows_sgpr():
    a("s_lshl_b32 s46, s30, 9")
    a("s_sub_u32 s47, s31, 16")
    a("s_lshl_b32 s47, s47, 5")
    a("s_add_u32 s46, s46, s47")

def wo_finish(W, first):
    a("s_waitcnt vmcnt(0)")
    preperm(W, W + 4, 112)
    preperm(W + 8, W + 12, 120)
    publish_final(20)
    a("v_lshrrev_b32 v8, 3, v0")
    a("v_lshlrev_b32 v8, 3, v8")
    stamp(5)
    barrier()
    a(f"ds_read_b64 v[10:11], v8 offset:{OPAIR}")
    a("s_waitcnt lgkmcnt(0)")
    dots(20, 112, "v10", first=first)
    dots(20, 120, "v11")
    reduce_hi(20, [8])
    publish_final_store(20)
    stamp(6)

a("L_X:")
a("s_waitcnt lgkmcnt(0)")
a("s_mul_i32 s35, s31, 7")
a("s_add_u32 s35, s35, s3")
tile_bases()
k_loads()
tile_pre()
stamp(1)
barrier()
tile_scores2()
barrier()
tile_pv(0)
barrier()
combine(7)
stamp(5)
a("s_branch L_fin")

a("L_Yq:")
a("s_waitcnt lgkmcnt(0)")
a("s_lshl_b32 s35, s3, 19")
a("s_lshl_b32 s45, s30, 10")
a("s_add_u32 s35, s35, s45")
a("s_sub_u32 s45, s31, 16")
a("s_lshl_b32 s45, s45, 7")
a("s_add_u32 s35, s35, s45")
base_add(36, 10, "s35")
a("v_lshrrev_b32 v6, 3, v0")
a("v_lshlrev_b32 v6, 16, v6")
a("v_and_b32 v7, 7, v0")
a("v_lshl_add_u32 v6, v7, 4, v6")
for i in range(8):
    a(f"global_load_dwordx4 v[{64+4*i}:{67+4*i}], v6, s[36:37] nt")
    if i < 7: base_add(36, 36, 8192)
a("s_cmp_lt_u32 s3, 2")
a("s_cbranch_scc0 L_Yq_nok")
a("s_sub_u32 s35, s31, 16")
a("s_lshl_b32 s35, s35, 1")
a("s_add_u32 s35, s35, s3")
a("s_add_u32 s35, s35, 112")
tile_bases()
k_loads()
a("L_Yq_nok:")
a("v_lshrrev_b32 v6, 3, v0")
a("v_lshlrev_b32 v6, 4, v6")
a("s_lshl_b32 s35, s3, 7")
a("v_add_u32 v6, s35, v6")
a("v_and_b32 v7, 7, v0")
a("v_lshlrev_b32 v7, 5, v7")
a("v_lshrrev_b32 v8, 4, v0")
a("v_lshl_add_u32 v7, v8, 3, v7")
a("s_lshl_b32 s35, s3, 8")
a("v_add_u32 v7, s35, v7")
barrier()
a(f"ds_read_b128 v[28:31], v6 offset:{XB}")
a("s_cmp_lt_u32 s3, 2")
a("s_cbranch_scc0 L_Yq_q0")
for ver, extra in ((1, 8), (0, 0)):
    if ver == 0: a("L_Yq_q0:")
    for k in range(4):
        a(f"s_waitcnt vmcnt({6-2*k+extra}) lgkmcnt(0)")
        t = 96 + 8 * (k & 1)
        preperm(64 + 8 * k, 68 + 8 * k, t)
        dots(20, t, f"v{28+k}", first=(k == 0))
    if ver == 1: a("s_branch L_Yq_q1")
a("L_Yq_q1:")
reduce_hi(20, [8])
a(f"ds_write_b64 v7, v[20:21] offset:{PART}")
stamp(1)
barrier()
a("s_cmp_lt_u32 s3, 2")
a("s_cbranch_scc0 L_Yq_notile")
tile_pre()
barrier()
tile_scores2()
barrier()
wo_rows_sgpr()
gemv_loads(12, "s46", 96)
tile_pv(4)
barrier()
a("s_branch L_Yq_comb")
a("L_Yq_notile:")
barrier()
wo_rows_sgpr()
gemv_loads(12, "s46", 96)
barrier()
barrier()
a("L_Yq_comb:")
combine(2)
wo_finish(96, True)
a("s_branch L_fin")

a("L_Ym:")
a("s_waitcnt lgkmcnt(0)")
a("s_mul_i32 s46, s30, 7")
a("s_add_u32 s46, s46, s31")
a("s_sub_u32 s46, s46, 24")
a("s_mul_i32 s35, s3, 229376")
a("s_lshl_b32 s45, s46, 6")
a("s_add_u32 s35, s35, s45")
base_add(36, 16, "s35")
a("v_lshrrev_b32 v6, 2, v0")
a("v_mul_u32_u24 v6, 14336, v6")
a("v_and_b32 v7, 3, v0")
a("v_lshl_add_u32 v6, v7, 4, v6")
for i in range(4):
    if i == 1: pass
    a(f"global_load_dwordx4 v[{64+4*i}:{67+4*i}], v6, s[36:37] offset:{3584*(i%2)} nt")
    if i == 1: base_add(36, 36, 7168)
a("v_lshrrev_b32 v6, 2, v0")
a("v_lshlrev_b32 v6, 3, v6")
a("s_lshl_b32 s35, s3, 7")
a("v_add_u32 v9, s35, v6")
a("v_and_b32 v7, 3, v0")
a("v_lshlrev_b32 v7, 5, v7")
a("v_lshrrev_b32 v8, 4, v0")
a("v_lshl_add_u32 v7, v8, 3, v7")
a("v_add_u32 v12, s35, v7")
barrier()
a(f"ds_read_b64 v[28:29], v9 offset:{XB}")
for k in range(2):
    a(f"s_waitcnt vmcnt({2-2*k}) lgkmcnt(0)")
    t = 96 + 8 * k
    preperm(64 + 8 * k, 68 + 8 * k, t)
    dots(20, t, f"v{28+k}", first=(k == 0))
reduce_hi(20, [8, 4])
a(f"ds_write_b64 v12, v[20:21] offset:{PART}")
stamp(1)
a("s_lshl_b32 s46, s46, 5")
gemv_loads(20, "s46", 32)
wo_rows_sgpr()
gemv_loads(12, "s46", 96)
barrier()
a("v_lshrrev_b32 v8, 3, v0")
a("v_lshlrev_b32 v8, 3, v8")
barrier()
a(f"ds_read_b64 v[10:11], v8 offset:{HB}")
a("s_waitcnt vmcnt(4) lgkmcnt(0)")
preperm(32, 36, 112)
preperm(40, 44, 120)
dots(20, 112, "v10", first=True)
dots(20, 120, "v11")
wo_finish(96, False)
a("s_branch L_fin")

a("L_Ys:")
a("s_waitcnt lgkmcnt(0)")
wo_rows_sgpr()
gemv_loads(12, "s46", 96)
wo_finish(96, True)
a("s_branch L_fin")

a("L_service:")
a("v_lshlrev_b32 v2, 4, v0")
a("v_mov_b32 v3, 0")
for k in range(4): a(f"v_mov_b32 v{4+k}, -1")
for k in range(4): a(f"v_mov_b32 v{8+k}, 0")
a("s_waitcnt lgkmcnt(0)")
a("s_cmp_lt_u32 s31, 16")
a("s_cbranch_scc1 L_sv_nox")
a("s_cmp_eq_u32 s31, 31")
a("s_cbranch_scc1 L_sv_nox")
a("s_mov_b32 exec_hi, 0x00ffffff")
a("global_load_dwordx4 v[8:11], v2, s[4:5]")
a("s_mov_b32 exec_hi, -1")
a("L_sv_nox:")
a("global_load_dword v12, v3, s[28:29] sc1")
a("v_lshlrev_b32 v13, 3, v0")
a("v_mov_b32 v14, 0"); a("v_mov_b32 v15, 0")
a(f"ds_write_b64 v13, v[14:15] offset:{ZR}")
a("v_lshlrev_b32 v13, 2, v0")
a("v_mov_b32 v16, 0xff800000")
a("v_cmp_gt_u32 vcc, 16, v0")
a("v_cndmask_b32 v16, v14, v16, vcc")
a("s_mov_b32 exec_hi, 0")
a(f"ds_write_b32 v13, v16 offset:{SMAX}")
a("s_mov_b64 exec, -1")
a("s_cmp_lt_u32 s31, 24")
a("s_cbranch_scc0 L_sv_noo")
a("s_lshl_b32 s35, s30, 16")
a("s_lshl_b32 s45, s31, 11")
a("s_add_u32 s35, s35, s45")
a(f"s_add_u32 s35, s35, {WS_O}")
base_add(36, 28, "s35")
a("global_store_dwordx4 v2, v[4:7], s[36:37] sc1")
a("global_store_dwordx4 v2, v[4:7], s[36:37] offset:1024 sc1")
a("s_lshl_b32 s35, s30, 9")
a("s_lshl_b32 s45, s31, 3")
a("s_add_u32 s35, s35, s45")
a(f"s_add_u32 s35, s35, {WS_S}")
base_add(36, 28, "s35")
a("v_lshlrev_b32 v13, 8, v0")
a("s_mov_b64 exec, 3")
a("global_store_dwordx2 v13, v[4:5], s[36:37] sc1")
a("s_mov_b64 exec, -1")
a("L_sv_noo:")
a("s_cmp_lt_u32 s31, 16")
a("s_cbranch_scc1 L_sv_nof")
a("s_lshl_b32 s35, s30, 4")
a("s_add_u32 s35, s35, s31")
a("s_sub_u32 s35, s35, 16")
a("s_lshl_b32 s35, s35, 5")
a(f"s_add_u32 s35, s35, {WS_F}")
base_add(36, 28, "s35")
a("v_lshlrev_b32 v13, 12, v0")
a("s_mov_b32 exec_hi, 0x00ffffff")
a("global_store_dwordx4 v13, v[4:7], s[36:37] sc1")
a("global_store_dwordx4 v13, v[4:7], s[36:37] offset:16 sc1")
a("s_mov_b32 exec_hi, -1")
a("L_sv_nof:")
a("s_lshl_b32 s35, s30, 7")
a(f"s_add_u32 s35, s35, {WS_RDY}")
base_add(38, 28, "s35")
a("s_lshl_b32 s35, s30, 11")
a(f"s_add_u32 s35, s35, {WS_Q}")
base_add(40, 28, "s35")

def tag_and_rdy():
    a("s_waitcnt vmcnt(0)")
    a("v_readfirstlane_b32 s34, v12")
    a("s_mul_i32 s34, s34, 1664525")
    a("s_add_u32 s34, s34, 1013904223")
    a("s_lshl_b32 s35, s31, 2")
    a("v_mov_b32 v13, s35")
    a("v_mov_b32 v14, s34")
    a("s_mov_b64 exec, 1")
    a("global_store_dword v13, v14, s[38:39] sc1")
    a("s_mov_b64 exec, -1")

def q_gather():
    lp = a.newlabel("L_qp"); dn = a.newlabel("L_qd")
    a("v_lshlrev_b32 v13, 3, v0")
    a.label(lp)
    a("global_load_dwordx4 v[16:19], v2, s[40:41] sc1")
    a("global_load_dwordx4 v[20:23], v2, s[40:41] offset:1024 sc1")
    a("s_waitcnt vmcnt(0)")
    a("v_xor_b32 v24, s34, v17")
    a("v_xor_b32 v25, s34, v19")
    a("v_xor_b32 v26, s34, v21")
    a("v_xor_b32 v27, s34, v23")
    a("v_or3_b32 v24, v24, v25, v26")
    a("v_or_b32 v24, v24, v27")
    a("v_cmp_ne_u32 vcc, 0, v24")
    a(f"s_cbranch_vccz {dn}")
    spin_guard(lp, dn)
    a.label(dn)
    a(f"ds_write2_b32 v13, v16, v18 offset0:0 offset1:1")
    a(f"ds_write2_b32 v13, v20, v22 offset0:{QHS//4} offset1:{QHS//4+1}")

def stats_publish():
    a("v_and_b32 v13, 1, v0")
    a("v_lshlrev_b32 v13, 5, v13")
    a(f"ds_read_b128 v[16:19], v13 offset:{SMAX}")
    a(f"ds_read_b128 v[20:23], v13 offset:{SMAX+16}")
    a(f"ds_read_b128 v[24:27], v13 offset:{LSUM}")
    a(f"ds_read_b128 v[28:31], v13 offset:{LSUM+16}")
    a("s_lshl_b32 s35, s30, 9")
    a("s_lshl_b32 s45, s31, 3")
    a("s_add_u32 s35, s35, s45")
    a(f"s_add_u32 s35, s35, {WS_S}")
    base_add(42, 28, "s35")
    a("v_lshlrev_b32 v13, 8, v0")
    a("s_waitcnt lgkmcnt(0)")
    a("v_max3_f32 v16, v16, v17, v18")
    a("v_max3_f32 v19, v19, v20, v21")
    a("v_max3_f32 v16, v16, v22, v23")
    a("v_max_f32 v16, v16, v19")
    a("v_add_f32 v24, v24, v25"); a("v_add_f32 v26, v26, v27"); a("v_add_f32 v28, v28, v29"); a("v_add_f32 v30, v30, v31")
    a("v_add_f32 v24, v24, v26"); a("v_add_f32 v28, v28, v30")
    a("v_add_f32 v17, v24, v28")
    a("v_min_u32 v16, -2, v16")
    a("v_min_u32 v17, -2, v17")
    a("s_mov_b64 exec, 3")
    a("global_store_dwordx2 v13, v[16:17], s[42:43] sc1")
    a("s_mov_b64 exec, -1")

def rdy_check_group():
    lp = a.newlabel("L_rp"); dn = a.newlabel("L_rd")
    a("v_min_u32 v13, 23, v0")
    a("v_lshlrev_b32 v13, 2, v13")
    a.label(lp)
    a("global_load_dword v16, v13, s[38:39] sc1")
    a("s_waitcnt vmcnt(0)")
    a("v_cmp_ne_u32 vcc, s34, v16")
    a(f"s_cbranch_vccz {dn}")
    spin_guard(lp, dn)
    a.label(dn)

def o_gather():
    lp = a.newlabel("L_op"); dn = a.newlabel("L_od")
    a("s_lshl_b32 s35, s30, 16")
    a("s_sub_u32 s45, s31, 16")
    a("s_lshl_b32 s46, s45, 7")
    a("s_add_u32 s35, s35, s46")
    a(f"s_add_u32 s35, s35, {WS_O}")
    base_add(36, 28, "s35")
    base_add(46, 36, 16384)
    base_add(48, 36, 32768)
    a("s_lshl_b32 s35, s30, 9")
    a("s_lshr_b32 s45, s45, 3")
    a("s_lshl_b32 s45, s45, 8")
    a("s_add_u32 s35, s35, s45")
    a(f"s_add_u32 s35, s35, {WS_S}")
    base_add(42, 28, "s35")
    a("v_and_b32 v13, 7, v0")
    a("v_lshlrev_b32 v14, 3, v13")
    a("v_lshlrev_b32 v13, 11, v13")
    a("v_lshrrev_b32 v15, 3, v0")
    a("v_lshl_add_u32 v13, v15, 4, v13")
    a("v_lshlrev_b32 v15, 3, v15")
    a.label(lp)
    a("global_load_dwordx4 v[16:19], v13, s[36:37] sc1")
    a("global_load_dwordx4 v[20:23], v13, s[46:47] sc1")
    a("global_load_dwordx4 v[24:27], v13, s[48:49] sc1")
    a("global_load_dwordx2 v[28:29], v14, s[42:43] sc1")
    a("global_load_dwordx2 v[30:31], v14, s[42:43] offset:64 sc1")
    a("global_load_dwordx2 v[32:33], v14, s[42:43] offset:128 sc1")
    a("s_waitcnt vmcnt(0)")
    a("v_max3_u32 v34, v16, v17, v18")
    a("v_max3_u32 v35, v19, v20, v21")
    a("v_max3_u32 v36, v22, v23, v24")
    a("v_max3_u32 v37, v25, v26, v27")
    a("v_max3_u32 v38, v28, v29, v30")
    a("v_max3_u32 v39, v31, v32, v33")
    a("v_max3_u32 v34, v34, v35, v36")
    a("v_max3_u32 v37, v37, v38, v39")
    a("v_max_u32 v34, v34, v37")
    a("v_cmp_eq_u32 vcc, -1, v34")
    a(f"s_cbranch_vccz {dn}")
    spin_guard(lp, dn)
    a.label(dn)
    stamp(4)
    a("v_max3_f32 v34, v28, v30, v32")
    for pat in ["quad_perm:[1,0,3,2]", "quad_perm:[2,3,0,1]", "row_half_mirror"]:
        a(f"v_max_f32_dpp v34, v34, v34 {pat} row_mask:0xf bank_mask:0xf")
    for i in range(3):
        a(f"v_sub_f32 v{35+i}, v{28+2*i}, v34")
    for i in range(3):
        a(f"v_mul_f32 v{35+i}, {hex(f2u(CEXP))}, v{35+i}")
    for i in range(3):
        a(f"v_exp_f32 v{35+i}, v{35+i}")
    a("v_mul_f32 v38, v35, v29")
    a("v_fmac_f32 v38, v36, v31")
    a("v_fmac_f32 v38, v37, v33")
    for k in range(4):
        a(f"v_mul_f32 v{40+k}, v35, v{16+k}")
    for k in range(4):
        a(f"v_fmac_f32 v{40+k}, v36, v{20+k}")
    for k in range(4):
        a(f"v_fmac_f32 v{40+k}, v37, v{24+k}")
    for pat in ["quad_perm:[1,0,3,2]", "quad_perm:[2,3,0,1]", "row_half_mirror"]:
        for r in (38, 40, 41, 42, 43):
            a(f"v_add_f32_dpp v{r}, v{r}, v{r} {pat} row_mask:0xf bank_mask:0xf")
    a("v_rcp_f32 v38, v38")
    for k in range(4):
        a(f"v_mul_f32 v{40+k}, v{40+k}, v38")
    a("v_cvt_pk_bf16_f32 v40, v40, v41")
    a("v_cvt_pk_bf16_f32 v41, v42, v43")
    a(f"ds_write_b64 v15, v[40:41] offset:{OPAIR}")

a("s_cmp_lt_u32 s31, 16")
a("s_cbranch_scc1 L_svX")
a("s_cmp_lt_u32 s31, 24")
a("s_cbranch_scc1 L_svYq")
a("s_cmp_lt_u32 s31, 31")
a("s_cbranch_scc1 L_svYm")
a("s_branch L_svYs")

a("L_svX:")
tag_and_rdy()
stamp(1)
q_gather()
stamp(2)
barrier()
a("s_min_u32 s35, s31, 6")
a("s_lshl_b32 s35, s35, 3")
a("s_add_u32 s45, s35, s30")
a("v_and_b32 v40, 1, v0")
a("v_lshlrev_b32 v40, 2, v40")
a("v_lshrrev_b32 v41, 4, v0")
a("v_add_u32 v40, v40, v41")
a("s_lshl_b32 s35, s45, 3")
a("v_add_u32 v40, s35, v40")
a("v_lshlrev_b32 v40, 1, v40")
a("s_lshl_b32 s35, s45, 12")
a(f"s_add_u32 s35, s35, {WS_F}")
base_add(46, 28, "s35")
base_add(48, 28, WS_RDY)
a("v_lshrrev_b32 v13, 3, v0")
a("v_lshlrev_b32 v13, 7, v13")
a("v_and_b32 v14, 7, v0")
a("v_lshl_add_u32 v13, v14, 3, v13")
a("s_cmp_lt_u32 s31, 7")
a("s_cbranch_scc0 L_svX_nc")
a("global_load_ushort v41, v40, s[4:5]")
a("global_load_ushort v42, v40, s[22:23]")
lp = a.newlabel("L_yp"); dn = a.newlabel("L_yd")
a.label(lp)
a("global_load_dwordx2 v[16:17], v13, s[48:49] offset:64 sc1")
a("s_waitcnt vmcnt(0)")
a("v_xor_b32 v16, s34, v16")
a("v_xor_b32 v17, s34, v17")
a("v_or_b32 v16, v16, v17")
a("v_cmp_ne_u32 vcc, 0, v16")
a(f"s_cbranch_vccz {dn}")
spin_guard(lp, dn)
a.label(dn)
a("L_svX_nc:")
barrier()
barrier()
stats_publish()
combine(7)
stamp(3)
a("s_cmp_lt_u32 s31, 7")
a("s_cbranch_scc0 L_fin")
a("v_lshlrev_b32 v2, 4, v0")
lp = a.newlabel("L_fp"); dn = a.newlabel("L_fd")
a.label(lp)
for i in range(4):
    a(f"global_load_dwordx4 v[{16+4*i}:{19+4*i}], v2, s[46:47] offset:{1024*i} sc1")
a("s_waitcnt vmcnt(0)")
a("v_max3_u32 v32, v16, v17, v18")
a("v_max3_u32 v33, v19, v20, v21")
a("v_max3_u32 v34, v22, v23, v24")
a("v_max3_u32 v35, v25, v26, v27")
a("v_max3_u32 v36, v28, v29, v30")
a("v_max3_u32 v32, v32, v33, v31")
a("v_max3_u32 v34, v34, v35, v36")
a("v_max_u32 v32, v32, v34")
a("v_cmp_eq_u32 vcc, -1, v32")
a(f"s_cbranch_vccz {dn}")
spin_guard(lp, dn)
a.label(dn)
stamp(4)
for k in range(4):
    a(f"v_add_f32 v{16+k}, v{16+k}, v{20+k}")
    a(f"v_add_f32 v{24+k}, v{24+k}, v{28+k}")
for k in range(4):
    a(f"v_add_f32 v{16+k}, v{16+k}, v{24+k}")
a("v_permlane32_swap_b32 v16, v18")
a("v_permlane32_swap_b32 v17, v19")
a("v_add_f32 v16, v16, v18")
a("v_add_f32 v17, v17, v19")
a("v_permlane16_swap_b32 v16, v17")
a("v_add_f32 v16, v16, v17")
for r in (8, 4, 2):
    a(f"v_add_f32_dpp v16, v16, v16 row_ror:{r} row_mask:0xf bank_mask:0xf")
a("v_lshlrev_b32 v41, 16, v41")
a("v_lshlrev_b32 v42, 16, v42")
a("v_add_f32 v16, v16, v42")
a("v_add_f32 v16, v16, v41")
a("v_cvt_pk_bf16_f32 v16, v16, v16")
a("s_mov_b32 exec_lo, 0x00030003")
a("s_mov_b32 exec_hi, 0x00030003")
a("global_store_short v40, v16, s[24:25]")
a("s_mov_b64 exec, -1")
stamp(5)
a("s_cmp_eq_u32 s2, 0")
a("s_cbranch_scc0 L_fin")
a("v_mov_b32 v14, s34")
a("v_mov_b32 v13, 0")
a("s_mov_b64 exec, 1")
a("global_store_dword v13, v14, s[28:29] sc1")
a("s_mov_b64 exec, -1")
a("s_branch L_fin")

a("L_svYq:")
a("s_waitcnt vmcnt(6)")
layernorm(8, 16, 24)
a("s_mov_b32 exec_hi, 0x00ffffff")
a(f"ds_write_b128 v2, v[8:11] offset:{XB}")
a("s_mov_b32 exec_hi, -1")
stamp(1)
barrier()
tag_and_rdy()
a("v_lshlrev_b32 v13, 3, v0")
a("s_sub_u32 s35, s31, 16")
a("s_lshl_b32 s35, s35, 8")
a("v_add_u32 v14, s35, v13")
barrier()
a("s_mov_b32 exec_hi, 0")
for w in range(7):
    a(f"ds_read_b64 v[{16+2*w}:{17+2*w}], v13 offset:{PART+256*w}")
a("s_waitcnt lgkmcnt(0)")
for k in range(2):
    a(f"v_add_f32 v{16+k}, v{16+k}, v{18+k}")
    a(f"v_add_f32 v{20+k}, v{20+k}, v{22+k}")
    a(f"v_add_f32 v{24+k}, v{24+k}, v{26+k}")
for k in range(2):
    a(f"v_add_f32 v{16+k}, v{16+k}, v{20+k}")
    a(f"v_add_f32 v{24+k}, v{24+k}, v{28+k}")
for k in range(2):
    a(f"v_add_f32 v{16+k}, v{16+k}, v{24+k}")
a("v_cvt_pk_bf16_f32 v16, v16, v17")
a("v_mov_b32 v17, s34")
a("global_store_dwordx2 v14, v[16:17], s[40:41] sc1")
a("s_mov_b64 exec, -1")
stamp(2)
q_gather()
stamp(3)
barrier()
rdy_check_group()
barrier()
barrier()
stats_publish()
combine(2)
o_gather()
stamp(5)
barrier()
a("s_branch L_fin")

a("L_svYm:")
a("s_mul_i32 s46, s30, 7")
a("s_add_u32 s46, s46, s31")
a("s_sub_u32 s46, s46, 24")
a("s_lshl_b32 s35, s46, 6")
a("v_and_b32 v13, 15, v0")
a("v_lshlrev_b32 v13, 2, v13")
a("v_add_u32 v13, s35, v13")
a("global_load_dword v44, v13, s[18:19]")
a("s_waitcnt vmcnt(4)")
layernorm(8, 16, 24)
layernorm(8, 16, 24)
a("s_mov_b32 exec_hi, 0x00ffffff")
a(f"ds_write_b128 v2, v[8:11] offset:{XB}")
a("s_mov_b32 exec_hi, -1")
stamp(1)
barrier()
tag_and_rdy()
a("v_and_b32 v13, 15, v0")
a("v_lshlrev_b32 v14, 2, v13")
a("v_lshlrev_b32 v13, 3, v13")
barrier()
for w in range(7):
    a(f"ds_read_b64 v[{16+2*w}:{17+2*w}], v13 offset:{PART+128*w}")
a("s_waitcnt lgkmcnt(0)")
for k in range(2):
    a(f"v_add_f32 v{16+k}, v{16+k}, v{18+k}")
    a(f"v_add_f32 v{20+k}, v{20+k}, v{22+k}")
    a(f"v_add_f32 v{24+k}, v{24+k}, v{26+k}")
for k in range(2):
    a(f"v_add_f32 v{16+k}, v{16+k}, v{20+k}")
    a(f"v_add_f32 v{24+k}, v{24+k}, v{28+k}")
for k in range(2):
    a(f"v_add_f32 v{16+k}, v{16+k}, v{24+k}")
a("v_cvt_pk_bf16_f32 v18, v16, v17")
a("v_lshlrev_b32 v16, 16, v18")
a("v_and_b32 v17, 0xffff0000, v18")
a("v_lshlrev_b32 v18, 16, v44")
a("v_and_b32 v19, 0xffff0000, v44")
a("v_add_f32 v16, v16, v18")
a("v_add_f32 v17, v17, v19")
a("v_cvt_pk_bf16_f32 v18, v16, v17")
a("v_lshlrev_b32 v16, 16, v18")
a("v_and_b32 v17, 0xffff0000, v18")
K0 = math.sqrt(2.0 / math.pi); K1 = 0.044715
c1 = -2.0 * K0 * math.log2(math.e); c3 = c1 * K1
a(f"v_mov_b32 v22, {hex(f2u(c1))}")
for k in range(2):
    a(f"v_mul_f32 v{18+k}, v{16+k}, v{16+k}")
for k in range(2):
    a(f"v_fmamk_f32 v{18+k}, v{18+k}, {hex(f2u(c3))}, v22")
for k in range(2):
    a(f"v_mul_f32 v{18+k}, v{18+k}, v{16+k}")
for k in range(2):
    a(f"v_exp_f32 v{18+k}, v{18+k}")
for k in range(2):
    a(f"v_add_f32 v{18+k}, 1.0, v{18+k}")
for k in range(2):
    a(f"v_rcp_f32 v{18+k}, v{18+k}")
for k in range(2):
    a(f"v_mul_f32 v{16+k}, v{16+k}, v{18+k}")
a("v_cvt_pk_bf16_f32 v16, v16, v17")
a(f"ds_write_b32 v14, v16 offset:{HB}")
stamp(2)
barrier()
rdy_check_group()
o_gather()
stamp(5)
barrier()
a("s_branch L_fin")

a("L_svYs:")
tag_and_rdy()
rdy_check_group()
o_gather()
stamp(5)
barrier()

a("L_fin:")
if PROFILE:
    stamp(7)
    a("s_waitcnt lgkmcnt(0)")
    a("s_lshl_b32 s35, s2, 3")
    a("s_add_u32 s35, s35, s3")
    a("s_lshl_b32 s35, s35, 6")
    a(f"s_add_u32 s35, s35, {WS_PROF}")
    base_add(36, 28, "s35")
    for k in range(8):
        a(f"v_mov_b32 v{16+k}, s{64+2*k}")
    a("v_mov_b32 v13, 0")
    a("s_mov_b64 exec, 1")
    a("global_store_dwordx4 v13, v[16:19], s[36:37]")
    a("global_store_dwordx4 v13, v[20:23], s[36:37] offset:16")
a("L_end:")

open(OUT, "w").write(wrap(a.text(), 256, 512, LDS_BYTES, vgpr=128, sgpr=96))
print("wrote", OUT, len(a.lines), "lines")
```

```python
import sys, math, struct
sys.path.insert(0, "gen"); sys.path.insert(0, "exp")
from asmlib import Asm
from gen_common import wrap

PROFILE = "--prof" in sys.argv
def opt(name, default):
    for x in sys.argv:
        if x.startswith(f"--{name}="): return int(x.split("=")[1])
    return default
VE = opt("ve", 8)
VE0 = opt("ve0", 0)
QR = opt("qr", 16)
SLP = opt("slp", 2)
PSLP = opt("pslp", 0)
QSLP = opt("qslp", 1)
OUT = [x for x in sys.argv[1:] if not x.startswith("--")][0]
VE = max(VE, VE0)

WS_R2  = 0x1000
WS_R1  = 0x2000
WS_S   = 0x10000
WS_O   = 0x80000
WS_F   = 0x100000
WS_Q   = 0x200000
WS_PROF = 0x8000000
QS = 0x000; QHS = 640
ZR = 0x500
SMAX = 0x700; LSUM = 0x740
OPAIR = 0x780
XB = 0x800
HB = 0xB80
PART = 0xC00
FIN = 0xC00
OB = 0x1400
LDS_BYTES = 0x5400

CEXP = 0.0625 * math.log2(math.e)
def f2u(f): return struct.unpack("<I", struct.pack("<f", f))[0]

a = Asm()
STP = [96, 98, 100, 26, 36, 38, 14, 16]
STX = [96, 98, 100, 26, 36, 38, 40, 42]
STY = [96, 98, 100, 26, 64, 66, 68, 70]
cur_map = [STY]
def stamp(k):
    if PROFILE:
        r = cur_map[0][k]
        a(f"s_memrealtime s[{r}:{r+1}]")
def base_add(dst, src, offs):
    a(f"s_add_u32 s{dst}, s{src}, {offs}")
    a(f"s_addc_u32 s{dst+1}, s{src+1}, 0")
def barrier():
    a("s_waitcnt lgkmcnt(0)")
    a("s_barrier")
def guard(lp):
    a("s_add_u32 s44, s44, 1")
    a("s_cmp_gt_u32 s44, 0x40000")
    a(f"s_cbranch_scc0 {lp}")

def pollm(issue, check):
    lp = a.newlabel("L_pl"); dn = a.newlabel("L_pd")
    a.label(lp)
    issue()
    a(f"s_waitcnt vmcnt(0)")
    check()
    a(f"s_cbranch_vccz {dn}")
    a("s_mov_b64 exec, vcc")
    if PSLP: a(f"s_sleep {PSLP}")
    guard(lp)
    a.label(dn)
    a("s_mov_b64 exec, -1")

def light(load, check, done_if_nz=True, slp=None):
    lp = a.newlabel("L_lt"); dn = a.newlabel("L_ld")
    slp = SLP if slp is None else slp
    a.label(lp)
    load()
    a("s_waitcnt vmcnt(0)")
    check()
    a(f"s_cbranch_vccnz {dn}" if done_if_nz else f"s_cbranch_vccz {dn}")
    if slp: a(f"s_sleep {slp}")
    guard(lp)
    a.label(dn)

def preperm(src_a, src_b, dst, n=4):
    for k in range(n):
        a(f"v_perm_b32 v{dst+2*k}, v{src_b+k}, v{src_a+k}, s32")
        a(f"v_perm_b32 v{dst+2*k+1}, v{src_b+k}, v{src_a+k}, s33")
def dots(acc, pp, coef, n=8, first=False):
    for k in range(n):
        c = "0" if first else f"v{acc+k}"
        a(f"v_dot2_f32_bf16 v{acc+k}, v{pp+k}, {coef}, {c}")
def reduce_hi(acc, extra_ror):
    for k in range(4): a(f"v_permlane32_swap_b32 v{acc+k}, v{acc+k+4}")
    for k in range(4): a(f"v_add_f32 v{acc+k}, v{acc+k}, v{acc+k+4}")
    for k in range(2): a(f"v_permlane16_swap_b32 v{acc+k}, v{acc+k+2}")
    for k in range(2): a(f"v_add_f32 v{acc+k}, v{acc+k}, v{acc+k+2}")
    for r in extra_ror:
        for k in range(2):
            a(f"v_add_f32_dpp v{acc+k}, v{acc+k}, v{acc+k} row_ror:{r} row_mask:0xf bank_mask:0xf")
def dpp_red16(op, regs, last_bcast=True):
    for pat in ["quad_perm:[1,0,3,2]", "quad_perm:[2,3,0,1]", "row_half_mirror", "row_mirror"]:
        for (d, s) in regs:
            a(f"{op}_dpp v{d}, v{s}, v{s} {pat} row_mask:0xf bank_mask:0xf")
        regs = [(d, d) for (d, s) in regs]
    if last_bcast:
        for (d, s) in regs:
            a(f"{op}_dpp v{d}, v{d}, v{d} row_bcast:15 row_mask:0x2 bank_mask:0xf")
def wave_sum_to_sgpr(v, sdst):
    dpp_red16("v_add_f32", [(v, v)], last_bcast=False)
    a(f"v_add_f32_dpp v{v}, v{v}, v{v} row_bcast:15 row_mask:0xa bank_mask:0xf")
    a(f"v_add_f32_dpp v{v}, v{v}, v{v} row_bcast:31 row_mask:0xc bank_mask:0xf")
    a(f"v_readlane_b32 s{sdst}, v{v}, 63")

def layernorm(pk, f, t):
    for k in range(4):
        a(f"v_lshlrev_b32 v{f+2*k}, 16, v{pk+k}")
        a(f"v_and_b32 v{f+2*k+1}, 0xffff0000, v{pk+k}")
    a(f"v_add_f32 v{t}, v{f}, v{f+1}")
    a(f"v_add_f32 v{t+1}, v{f+2}, v{f+3}")
    a(f"v_add_f32 v{t+2}, v{f+4}, v{f+5}")
    a(f"v_add_f32 v{t+3}, v{f+6}, v{f+7}")
    a(f"v_add_f32 v{t}, v{t}, v{t+1}")
    a(f"v_add_f32 v{t+2}, v{t+2}, v{t+3}")
    a(f"v_add_f32 v{t}, v{t}, v{t+2}")
    wave_sum_to_sgpr(t, 35)
    a(f"v_mov_b32 v{t+1}, {hex(f2u(1.0/448))}")
    a(f"v_mul_f32 v{t+2}, s35, v{t+1}")
    a(f"v_mov_b32 v{t}, 0")
    a(f"v_mov_b32 v{t+5}, 0")
    a("s_mov_b32 exec_hi, 0x00ffffff")
    for k in range(0, 8, 2):
        a(f"v_sub_f32 v{t+3}, v{f+k}, v{t+2}")
        a(f"v_sub_f32 v{t+4}, v{f+k+1}, v{t+2}")
        a(f"v_fmac_f32 v{t}, v{t+3}, v{t+3}")
        a(f"v_fmac_f32 v{t+5}, v{t+4}, v{t+4}")
    a("s_mov_b32 exec_hi, -1")
    a(f"v_add_f32 v{t}, v{t}, v{t+5}")
    wave_sum_to_sgpr(t, 35)
    a(f"v_mul_f32 v{t+3}, s35, v{t+1}")
    a(f"v_cvt_pk_bf16_f32 v{t+4}, v{t+2}, v{t+3}")
    a(f"v_lshlrev_b32 v{t+2}, 16, v{t+4}")
    a(f"v_and_b32 v{t+3}, 0xffff0000, v{t+4}")
    a(f"v_add_f32 v{t+3}, {hex(f2u(1e-5))}, v{t+3}")
    a(f"v_cvt_pk_bf16_f32 v{t+3}, v{t+3}, v{t+3}")
    a(f"v_lshlrev_b32 v{t+3}, 16, v{t+3}")
    a(f"v_sqrt_f32 v{t+3}, v{t+3}")
    for k in range(8):
        a(f"v_sub_f32 v{f+k}, v{f+k}, v{t+2}")
    a(f"v_cvt_pk_bf16_f32 v{t+3}, v{t+3}, v{t+3}")
    a(f"v_lshlrev_b32 v{t+3}, 16, v{t+3}")
    a(f"v_rcp_f32 v{t+4}, v{t+3}")
    for k in range(4):
        a(f"v_cvt_pk_bf16_f32 v{pk+k}, v{f+2*k}, v{f+2*k+1}")
    for k in range(4):
        a(f"v_lshlrev_b32 v{f+2*k}, 16, v{pk+k}")
        a(f"v_and_b32 v{f+2*k+1}, 0xffff0000, v{pk+k}")
    for k in range(8):
        a(f"v_mul_f32 v{t}, v{f+k}, v{t+4}")
        a(f"v_fma_f32 v{t+1}, -v{t}, v{t+3}, v{f+k}")
        a(f"v_fma_f32 v{f+k}, v{t+1}, v{t+4}, v{t}")
    for k in range(4):
        a(f"v_cvt_pk_bf16_f32 v{pk+k}, v{f+2*k}, v{f+2*k+1}")
    a("s_mov_b32 exec_lo, 0")
    a("s_mov_b32 exec_hi, 0xff000000")
    for k in range(4): a(f"v_mov_b32 v{pk+k}, 0")
    a("s_mov_b64 exec, -1")

def load_tag():
    a("s_load_dword s34, s[28:29], 0")
def make_tag():
    a("s_mul_i32 s34, s34, 1664525")
    a("s_add_u32 s34, s34, 1013904223")

stamp(0)
a("s_cmp_ge_u32 s2, 256")
a("s_cbranch_scc1 L_end")
a("s_load_dwordx16 s[4:19], s[0:1], 0")
a("s_load_dwordx8 s[20:27], s[0:1], 64")
a("s_load_dwordx2 s[28:29], s[0:1], 96")
a("v_lshrrev_b32 v1, 6, v0")
a("v_and_b32 v0, 63, v0")
a("v_readfirstlane_b32 s3, v1")
a("s_and_b32 s30, s2, 7")
a("s_lshr_b32 s31, s2, 3")
a("s_add_u32 s3, s3, 7")
a("s_and_b32 s3, s3, 7")
a("s_mov_b32 s32, 0x05040100")
a("s_mov_b32 s33, 0x07060302")
a("s_mov_b32 s44, 0")
if PROFILE:
    for r in (98, 100, 64, 66, 68, 70): a(f"s_mov_b32 s{r}, 0")
a("s_cmp_lt_u32 s31, 16")
a("s_cbranch_scc1 L_X")
a("s_cmp_eq_u32 s3, 7")
a("s_cbranch_scc1 L_service")
a("s_cmp_lt_u32 s31, 24")
a("s_cbranch_scc1 L_Yq")
a("s_cmp_lt_u32 s31, 31")
a("s_cbranch_scc1 L_Ym")
a("s_branch L_Ys")

def k_loads():
    for oct in range(2):
        for ls in range(4):
            r = 32 + (oct * 4 + ls) * 4
            a(f"global_load_dwordx4 v[{r}:{r+3}], v2, s[{36+2*oct}:{37+2*oct}] offset:{ls*128} nt")
def v_loads(k0, k1):
    for k in range(k0, k1):
        b = 40 if k < 4 else 42
        a(f"global_load_dwordx4 v[{64+4*k}:{67+4*k}], v3, s[{b}:{b+1}] offset:{(k%4)*1024} nt")
def lds_w2(vaddr, r0, r1, off, stride):
    a(f"ds_write_b32 v{vaddr}, v{r0} offset:{off}")
    a(f"ds_write_b32 v{vaddr}, v{r1} offset:{off+stride}")
def if_service(lbl_skip):
    a("s_cmp_eq_u32 s3, 7")
    a(f"s_cbranch_scc0 {lbl_skip}")

a("L_X:")
cur_map[0] = STX
a("s_lshl_b32 s35, s31, 3")
a("s_add_u32 s35, s35, s3")
a("s_lshl_b32 s35, s35, 13")
a("s_lshl_b32 s45, s30, 22")
a("s_add_u32 s35, s35, s45")
a("s_add_u32 s35, s35, 0x300000")
a("v_and_b32 v2, 7, v0")
a("v_lshlrev_b32 v2, 9, v2")
a("v_lshrrev_b32 v3, 3, v0")
a("v_lshl_add_u32 v2, v3, 4, v2")
a("v_lshlrev_b32 v3, 4, v0")
a("s_lshl_b32 s46, s30, 15")
a("s_lshl_b32 s45, s31, 11")
a("s_add_u32 s46, s46, s45")
a(f"s_add_u32 s46, s46, {WS_O}")
for k in range(4): a(f"v_mov_b32 v{4+k}, -1")
a("s_waitcnt lgkmcnt(0)")
base_add(36, 6, "s35")
base_add(38, 36, 4096)
base_add(40, 8, "s35")
base_add(42, 40, 4096)
base_add(56, 28, "s46")
a("s_mov_b64 s[6:7], s[22:23]")
if PROFILE: a("s_mov_b32 s26, 0")
load_tag()
if_service("L_X_s1")
a("global_store_dwordx4 v3, v[4:7], s[56:57] sc1")
a("global_store_dwordx4 v3, v[4:7], s[56:57] offset:1024 sc1")
a("L_X_s1:")
k_loads()
v_loads(0, VE0)
a("v_and_b32 v6, 1, v0")
a(f"v_mul_u32_u24 v6, {QHS}, v6")
a("v_lshrrev_b32 v7, 4, v0")
a("v_lshlrev_b32 v7, 5, v7")
a("v_bfe_u32 v8, v0, 1, 1")
a("v_lshl_add_u32 v7, v8, 4, v7")
a(f"v_add_u32 v6, v6, v7")
a(f"v_add_u32 v7, {ZR}, v7")
a("v_bfe_u32 v8, v0, 2, 2")
a("v_cmp_eq_u32 vcc, 0, v8")
a("v_cndmask_b32 v4, v7, v6, vcc")
a("v_cmp_eq_u32 vcc, 1, v8")
a("v_cndmask_b32 v5, v7, v6, vcc")
a("v_mov_b32 v15, 0xff800000")
a("s_mov_b32 s46, 0x00ff00ff")
a("s_mov_b32 s47, 0")
a("s_lshl_b32 s35, s3, 2")
a("v_mov_b32 v28, s35")
a("v_mov_b32 v29, 0")
a("s_lshl_b32 s35, s3, 11")
a("v_lshl_add_u32 v30, v0, 5, s35")
a("v_lshrrev_b32 v31, 5, v0")
a("v_lshlrev_b32 v31, 2, v31")
a("s_min_u32 s35, s31, 1")
a("s_lshl_b32 s45, s30, 1")
a("s_add_u32 s45, s45, s35")
a("s_min_u32 s50, s45, 13")
a("s_lshl_b32 s35, s50, 14")
a("s_lshl_b32 s45, s3, 11")
a("s_add_u32 s35, s35, s45")
a(f"s_add_u32 s35, s35, {WS_F}")
base_add(52, 28, "s35")
a("s_lshl_b32 s35, s3, 6")
a(f"s_add_u32 s35, s35, {WS_R2}")
base_add(48, 28, "s35")
a(f"s_mul_i32 s35, s31, {QR}")
a("s_lshr_b32 s35, s35, 4")
a("s_lshl_b32 s35, s35, 11")
a("s_lshl_b32 s45, s30, 16")
a("s_add_u32 s35, s35, s45")
a(f"s_add_u32 s35, s35, {WS_Q}")
a("s_mul_i32 s45, s3, 192")
a("s_add_u32 s35, s35, s45")
base_add(58, 28, "s35")
a("s_lshr_b32 s35, s3, 2")
a(f"s_mul_i32 s35, s35, {QHS}")
a("s_and_b32 s45, s3, 3")
a("s_lshl_b32 s45, s45, 7")
a("s_add_u32 s35, s35, s45")
a("v_lshl_add_u32 v21, v0, 2, s35")
a("s_lshl_b32 s35, s30, 9")
a("s_lshl_b32 s45, s31, 4")
a("s_add_u32 s35, s35, s45")
a(f"s_add_u32 s35, s35, {WS_S}")
base_add(60, 28, "s35")
a("v_and_b32 v20, 31, v0")
a("s_lshl_b32 s35, s50, 5")
a("v_add_u32 v20, s35, v20")
a("v_lshlrev_b32 v20, 1, v20")
if_service("L_X_s2")
a("v_lshlrev_b32 v13, 3, v0")
a("v_mov_b32 v16, 0"); a("v_mov_b32 v17, 0")
a(f"ds_write_b64 v13, v[16:17] offset:{ZR}")
a("L_X_s2:")
a("s_waitcnt lgkmcnt(0)")
make_tag()
a(f"s_waitcnt vmcnt({VE0})")
stamp(1)
v_loads(VE0, VE)
if_service("L_X_s3")
a("s_lshl_b32 s35, s30, 7")
a("s_lshl_b32 s45, s31, 2")
a("s_add_u32 s35, s35, s45")
a(f"s_add_u32 s35, s35, {WS_R1}")
base_add(62, 28, "s35")
a("v_mov_b32 v8, s34")
a("s_mov_b64 exec, 1")
a("global_store_dword v29, v8, s[62:63] sc1")
a("s_mov_b64 exec, -1")
a("L_X_s3:")
WIN = [8, 64, 80]
lp = a.newlabel("L_sq"); rt = a.newlabel("L_sqr"); dn = a.newlabel("L_sqd")
a.label(lp)
for k in range(3):
    a(f"s_load_dwordx16 s[{WIN[k]}:{WIN[k]+15}], s[58:59], {64*k} glc")
a("s_waitcnt lgkmcnt(0)")
for gi in range(11):
    r = WIN[gi // 4] + 4 * (gi % 4) + 3
    a(f"s_cmp_lg_u32 s{r}, s34")
    a(f"s_cbranch_scc1 {rt}")
a(f"s_branch {dn}")
a.label(rt)
if QSLP: a(f"s_sleep {QSLP}")
guard(lp)
a.label(dn)
for i in range(32):
    gi, k = divmod(i, 3)
    r = WIN[gi // 4] + 4 * (gi % 4) + k
    a(f"v_writelane_b32 v8, s{r}, {i}")
a("s_mov_b32 exec_hi, 0")
a("ds_write_b32 v21, v8")
a("s_mov_b32 exec_hi, -1")
barrier()
for oct in range(2):
    for ls in range(4):
        r = 96 + (oct * 4 + ls) * 4
        a(f"ds_read_b128 v[{r}:{r+3}], v{4+oct} offset:{ls*128}")
v_loads(VE, 8)
a(f"s_waitcnt lgkmcnt(0)")
if PROFILE:
    for r in (36, 38, 40): a(f"s_mov_b32 s{r}, 0")
stamp(2)
first = True
for oct in range(2):
    for ls in range(4):
        ra = 96 + (oct * 4 + ls) * 4; rb = 32 + (oct * 4 + ls) * 4
        a(f"v_mfma_f32_16x16x32_bf16 v[8:11], v[{ra}:{ra+3}], v[{rb}:{rb+3}], {'0' if first else 'v[8:11]'}")
        first = False
a("v_add_f32_dpp v12, v10, v8 row_ror:8 row_mask:0xf bank_mask:0xf")
a("v_add_f32_dpp v13, v11, v9 row_ror:8 row_mask:0xf bank_mask:0xf")
a("v_cvt_pk_bf16_f32 v14, v12, v13")
a("v_lshlrev_b32 v12, 16, v14")
a("v_and_b32 v13, 0xffff0000, v14")
a("v_cndmask_b32 v12, v15, v12, s[46:47]")
a("v_cndmask_b32 v13, v15, v13, s[46:47]")
dpp_red16("v_max_f32", [(16, 12), (17, 13)])
a("s_mov_b64 exec, 0x10000")
lds_w2(28, 16, 17, SMAX, 32)
a("s_mov_b64 exec, -1")
barrier()
for k in range(4):
    a(f"ds_read_b128 v[{112+4*k}:{115+4*k}], v29 offset:{SMAX+16*k}")
a("s_waitcnt lgkmcnt(0)")
for h in range(2):
    b = 112 + 8 * h
    a(f"v_max3_f32 v{b}, v{b}, v{b+1}, v{b+2}")
    a(f"v_max3_f32 v{b+3}, v{b+3}, v{b+4}, v{b+5}")
for h in range(2):
    b = 112 + 8 * h
    a(f"v_max3_f32 v{b}, v{b}, v{b+6}, v{b+7}")
a("v_max_f32 v26, v112, v115")
a("v_max_f32 v27, v120, v123")
a("v_sub_f32 v12, v12, v26")
a("v_sub_f32 v13, v13, v27")
a(f"v_mul_f32 v12, {hex(f2u(CEXP))}, v12")
a(f"v_mul_f32 v13, {hex(f2u(CEXP))}, v13")
a("v_exp_f32 v12, v12")
a("v_exp_f32 v13, v13")
a("v_mov_b32_dpp v18, v12 quad_perm:[2,3,0,1] row_mask:0xf bank_mask:0xf")
a("v_mov_b32_dpp v19, v13 quad_perm:[2,3,0,1] row_mask:0xf bank_mask:0xf")
a("v_cvt_pk_bf16_f32 v18, v12, v18")
a("v_cvt_pk_bf16_f32 v19, v13, v19")
for m, L in enumerate((0, 4, 16, 20)):
    a(f"ds_bpermute_b32 v{48+m}, v31, v18 offset:{4*L}")
    a(f"ds_bpermute_b32 v{52+m}, v31, v19 offset:{4*L}")
dpp_red16("v_add_f32", [(16, 12), (17, 13)])
a("s_mov_b64 exec, 0x10000")
lds_w2(28, 16, 17, LSUM, 32)
a("s_mov_b64 exec, -1")
a("s_waitcnt lgkmcnt(0)")
stamp(3)
for m in range(4):
    a(f"s_waitcnt vmcnt({6-2*m})")
    ra = 64 + 8 * m; rb = ra + 4
    t = 112 + 8 * (m & 1)
    preperm(ra, rb, t, n=4)
    dots(32, t, f"v{48+m}", n=8, first=(m == 0))
    dots(40, t, f"v{52+m}", n=8, first=(m == 0))
stamp(4)
for k in range(8): a(f"v_permlane32_swap_b32 v{32+k}, v{40+k}")
for k in range(8): a(f"v_add_f32 v{32+k}, v{32+k}, v{40+k}")
a(f"ds_write_b128 v30, v[32:35] offset:{OB}")
a(f"ds_write_b128 v30, v[36:39] offset:{OB+16}")
a("s_lshl_b32 s35, s3, 8")
a("v_lshl_add_u32 v2, v0, 2, s35")
a(f"v_add_u32 v6, {OB}, v2")
a("v_and_b32 v7, 1, v0")
a("v_lshlrev_b32 v21, 8, v7")
a("v_lshlrev_b32 v7, 5, v7")
a("v_cmp_eq_u32 vcc, 0, v7")
a("v_cndmask_b32 v96, v27, v26, vcc")
a("v_mov_b32 v97, s34")
a("v_mov_b32 v99, s34")
barrier()
for k in range(4):
    a(f"ds_read2st64_b32 v[{8+2*k}:{9+2*k}], v6 offset0:{16*k} offset1:{16*k+8}")
a(f"ds_read_b128 v[100:103], v7 offset:{LSUM}")
a(f"ds_read_b128 v[104:107], v7 offset:{LSUM+16}")
a("s_waitcnt lgkmcnt(2)")
for k in range(4): a(f"v_add_f32 v{8+2*k}, v{8+2*k}, v{9+2*k}")
a("v_add_f32 v8, v8, v10")
a("v_add_f32 v12, v12, v14")
a("v_add_f32 v8, v8, v12")
a("v_min_u32 v8, -2, v8")
a("global_store_dword v2, v8, s[56:57] sc1")
if_service("L_X_s4")
a("s_waitcnt lgkmcnt(0)")
a("v_add_f32 v100, v100, v101"); a("v_add_f32 v102, v102, v103"); a("v_add_f32 v104, v104, v105"); a("v_add_f32 v106, v106, v107")
a("v_add_f32 v100, v100, v102"); a("v_add_f32 v104, v104, v106")
a("v_add_f32 v98, v100, v104")
a("s_mov_b64 exec, 3")
a("global_store_dwordx4 v21, v[96:99], s[60:61] sc1")
a("s_mov_b64 exec, -1")
a("L_X_s4:")
stamp(5)
a("s_cmp_lt_u32 s31, 2")
a(f"s_cbranch_scc0 L_fin")
a("s_cmp_lt_u32 s30, 7")
a(f"s_cbranch_scc0 L_fin")
a("global_load_ushort v22, v20, s[4:5]")
a("global_load_ushort v23, v20, s[6:7]")
a("v_and_b32 v24, 15, v0")
a("v_lshlrev_b32 v24, 2, v24")
a("v_and_b32 v25, 7, v0")
a("v_lshlrev_b32 v25, 4, v25")
a("v_lshrrev_b32 v26, 4, v0")
a("v_lshl_add_u32 v25, v26, 2, v25")
a("s_lshl_b32 s35, s3, 7")
a("v_add_u32 v25, s35, v25")
a("v_and_b32 v26, 31, v0")
a("v_lshlrev_b32 v26, 2, v26")
def f_issue():
    a(f"global_load_dwordx4 v[40:43], v3, s[52:53] sc1")
    a(f"global_load_dwordx4 v[44:47], v3, s[52:53] offset:1024 sc1")
    a(f"global_load_dword v48, v24, s[48:49] sc1")
def f_check():
    a(f"v_max3_u32 v50, v40, v41, v42")
    a(f"v_max3_u32 v51, v43, v44, v45")
    a(f"v_cmp_ne_u32 s[54:55], s34, v48")
    a(f"v_max3_u32 v50, v50, v46, v47")
    a("v_max_u32 v50, v50, v51")
    a("v_cmp_eq_u32 vcc, -1, v50")
    a("s_or_b64 vcc, vcc, s[54:55]")
lp = a.newlabel("L_fr"); dn = a.newlabel("L_frd")
light(lambda: a(f"global_load_dword v48, v24, s[48:49] sc1"), lambda: a(f"v_cmp_ne_u32 vcc, s34, v48"), done_if_nz=False, slp=0)
def f_issue2():
    a(f"global_load_dwordx4 v[40:43], v3, s[52:53] sc1")
    a(f"global_load_dwordx4 v[44:47], v3, s[52:53] offset:1024 sc1")
def f_check2():
    a(f"v_max3_u32 v50, v40, v41, v42")
    a(f"v_max3_u32 v51, v43, v44, v45")
    a(f"v_max3_u32 v50, v50, v46, v47")
    a("v_max_u32 v50, v50, v51")
    a("v_cmp_eq_u32 vcc, -1, v50")
pollm(f_issue2, f_check2)
for k in range(4): a(f"v_add_f32 v{40+k}, v{40+k}, v{44+k}")
a("v_permlane32_swap_b32 v40, v42")
a("v_permlane32_swap_b32 v41, v43")
a("v_add_f32 v40, v40, v42")
a("v_add_f32 v41, v41, v43")
a("v_permlane16_swap_b32 v40, v41")
a("v_add_f32 v40, v40, v41")
a(f"v_add_f32_dpp v40, v40, v40 row_ror:8 row_mask:0xf bank_mask:0xf")
a(f"ds_write_b32 v25, v40 offset:{FIN}")
a("v_lshlrev_b32 v22, 16, v22")
a("v_lshlrev_b32 v23, 16, v23")
a("v_add_f32 v22, v22, v23")
barrier()
if_service("L_fin")
for k in range(8):
    a(f"ds_read_b32 v{80+k}, v26 offset:{FIN+128*k}")
a("s_waitcnt lgkmcnt(0)")
for k in range(4): a(f"v_add_f32 v{80+2*k}, v{80+2*k}, v{81+2*k}")
a("v_add_f32 v80, v80, v82")
a("v_add_f32 v84, v84, v86")
a("v_add_f32 v80, v80, v84")
a("v_add_f32 v80, v80, v22")
a("v_cvt_pk_bf16_f32 v80, v80, v80")
a("s_mov_b32 exec_hi, 0")
a("global_store_short v20, v80, s[24:25]")
a("s_mov_b64 exec, -1")
a("s_cmp_eq_u32 s2, 0")
a("s_cbranch_scc0 L_fin")
a("v_mov_b32 v14, s34")
a("v_mov_b32 v13, 0")
a("s_mov_b64 exec, 1")
a("global_store_dword v13, v14, s[28:29] sc1")
a("s_mov_b64 exec, -1")
a("s_branch L_fin")

cur_map[0] = STY
def gemv_loads(ptr, row_sgpr, dst):
    a(f"s_mul_i32 s35, {row_sgpr}, 896")
    a("s_lshl_b32 s45, s3, 7")
    a("s_add_u32 s35, s35, s45")
    base_add(38, ptr, "s35")
    a("v_lshrrev_b32 v6, 3, v0")
    a("v_mul_u32_u24 v6, 3584, v6")
    a("v_and_b32 v7, 7, v0")
    a("v_lshl_add_u32 v6, v7, 4, v6")
    for i in range(4):
        a(f"global_load_dwordx4 v[{dst+4*i}:{dst+4*i+3}], v6, s[38:39] offset:{896*i} nt")
def publish_final_addr():
    a("s_lshl_b32 s35, s30, 4")
    a("s_add_u32 s35, s35, s31")
    a("s_sub_u32 s35, s35, 16")
    a("s_lshl_b32 s35, s35, 7")
    a("s_lshl_b32 s45, s3, 15")
    a("s_add_u32 s35, s35, s45")
    a(f"s_add_u32 s35, s35, {WS_F}")
    base_add(36, 28, "s35")
    a("v_bfe_u32 v6, v0, 2, 1")
    a("v_lshlrev_b32 v6, 14, v6")
    a("v_and_b32 v7, 3, v0")
    a("v_lshl_add_u32 v6, v7, 5, v6")
    a("v_lshrrev_b32 v7, 4, v0")
    a("v_lshl_add_u32 v6, v7, 3, v6")
def publish_final_store(acc):
    a(f"v_min_u32 v{acc}, -2, v{acc}")
    a(f"v_min_u32 v{acc+1}, -2, v{acc+1}")
    a("s_mov_b32 exec_lo, 0x00ff00ff")
    a("s_mov_b32 exec_hi, 0x00ff00ff")
    a(f"global_store_dwordx2 v6, v[{acc}:{acc+1}], s[36:37] sc1")
    a("s_mov_b64 exec, -1")
def wo_rows_sgpr():
    a("s_lshl_b32 s46, s30, 9")
    a("s_sub_u32 s47, s31, 16")
    a("s_lshl_b32 s47, s47, 5")
    a("s_add_u32 s46, s46, s47")
def wo_finish(W, first):
    a("s_waitcnt vmcnt(0)")
    preperm(W, W + 4, 112)
    preperm(W + 8, W + 12, 120)
    publish_final_addr()
    a("v_lshrrev_b32 v8, 3, v0")
    a("v_lshlrev_b32 v8, 3, v8")
    stamp(5)
    barrier()
    a(f"ds_read_b64 v[10:11], v8 offset:{OPAIR}")
    a("s_waitcnt lgkmcnt(0)")
    dots(20, 112, "v10", first=first)
    dots(20, 120, "v11")
    reduce_hi(20, [8])
    publish_final_store(20)
    stamp(6)

a("L_Yq:")
a("s_lshl_b32 s35, s3, 19")
a("s_lshl_b32 s45, s30, 10")
a("s_add_u32 s35, s35, s45")
a("s_sub_u32 s45, s31, 16")
a("s_lshl_b32 s45, s45, 7")
a("s_add_u32 s35, s35, s45")
a("v_lshrrev_b32 v6, 3, v0")
a("v_lshlrev_b32 v6, 16, v6")
a("v_and_b32 v7, 7, v0")
a("v_lshl_add_u32 v6, v7, 4, v6")
a("s_waitcnt lgkmcnt(0)")
base_add(36, 10, "s35")
a("s_barrier")
for i in range(8):
    a(f"global_load_dwordx4 v[{64+4*i}:{67+4*i}], v6, s[36:37] nt")
    if i < 7: base_add(36, 36, 8192)
a("v_lshrrev_b32 v6, 3, v0")
a("v_lshlrev_b32 v6, 4, v6")
a("s_lshl_b32 s35, s3, 7")
a("v_add_u32 v6, s35, v6")
a("v_and_b32 v7, 7, v0")
a("v_lshlrev_b32 v7, 5, v7")
a("v_lshrrev_b32 v8, 4, v0")
a("v_lshl_add_u32 v7, v8, 3, v7")
a("s_lshl_b32 s35, s3, 8")
a("v_add_u32 v7, s35, v7")
barrier()
a(f"ds_read_b128 v[28:31], v6 offset:{XB}")
for k in range(4):
    a(f"s_waitcnt vmcnt({6-2*k}) lgkmcnt(0)")
    t = 96 + 8 * (k & 1)
    preperm(64 + 8 * k, 68 + 8 * k, t)
    dots(20, t, f"v{28+k}", first=(k == 0))
reduce_hi(20, [8])
a(f"ds_write_b64 v7, v[20:21] offset:{PART}")
stamp(1)
barrier()
wo_rows_sgpr()
a("s_barrier")
gemv_loads(12, "s46", 96)
wo_finish(96, True)
a("s_branch L_fin")

a("L_Ym:")
a("s_mul_i32 s46, s30, 7")
a("s_add_u32 s46, s46, s31")
a("s_sub_u32 s46, s46, 24")
a("s_mul_i32 s35, s3, 229376")
a("s_lshl_b32 s45, s46, 6")
a("s_add_u32 s35, s35, s45")
a("v_lshrrev_b32 v6, 2, v0")
a("v_mul_u32_u24 v6, 14336, v6")
a("v_and_b32 v7, 3, v0")
a("v_lshl_add_u32 v6, v7, 4, v6")
a("s_waitcnt lgkmcnt(0)")
base_add(36, 16, "s35")
a("v_lshrrev_b32 v9, 2, v0")
a("v_lshlrev_b32 v9, 3, v9")
a("s_lshl_b32 s35, s3, 7")
a("v_add_u32 v9, s35, v9")
a("v_and_b32 v7, 3, v0")
a("v_lshlrev_b32 v7, 5, v7")
a("v_lshrrev_b32 v8, 4, v0")
a("v_lshl_add_u32 v7, v8, 3, v7")
a("v_add_u32 v12, s35, v7")
a("s_barrier")
for i in range(4):
    a(f"global_load_dwordx4 v[{64+4*i}:{67+4*i}], v6, s[36:37] offset:{3584*(i%2)} nt")
    if i == 1: base_add(36, 36, 7168)
barrier()
a(f"ds_read_b64 v[28:29], v9 offset:{XB}")
for k in range(2):
    a(f"s_waitcnt vmcnt({2-2*k}) lgkmcnt(0)")
    t = 96 + 8 * k
    preperm(64 + 8 * k, 68 + 8 * k, t)
    dots(20, t, f"v{28+k}", first=(k == 0))
reduce_hi(20, [8, 4])
a(f"ds_write_b64 v12, v[20:21] offset:{PART}")
stamp(1)
barrier()
a("s_lshl_b32 s46, s46, 5")
gemv_loads(20, "s46", 32)
wo_rows_sgpr()
gemv_loads(12, "s46", 48)
a("v_lshrrev_b32 v8, 3, v0")
a("v_lshlrev_b32 v8, 3, v8")
barrier()
a(f"ds_read_b64 v[10:11], v8 offset:{HB}")
a("s_waitcnt vmcnt(4) lgkmcnt(0)")
preperm(32, 36, 112)
preperm(40, 44, 120)
dots(20, 112, "v10", first=True)
dots(20, 120, "v11")
wo_finish(48, False)
a("s_branch L_fin")

a("L_Ys:")
a("s_waitcnt lgkmcnt(0)")
wo_rows_sgpr()
gemv_loads(12, "s46", 96)
wo_finish(96, True)
a("s_branch L_fin")

a("L_service:")
a("v_lshlrev_b32 v2, 4, v0")
a("v_mov_b32 v3, 0")
for k in range(4): a(f"v_mov_b32 v{4+k}, -1")
for k in range(4): a(f"v_mov_b32 v{8+k}, 0")
a("s_waitcnt lgkmcnt(0)")
a("s_cmp_eq_u32 s31, 31")
a("s_cbranch_scc1 L_sv_nox")
a("s_mov_b32 exec_hi, 0x00ffffff")
a("global_load_dwordx4 v[8:11], v2, s[4:5]")
a("s_mov_b32 exec_hi, -1")
a("s_barrier")
a("L_sv_nox:")
load_tag()
a("s_lshl_b32 s35, s30, 4")
a("s_add_u32 s35, s35, s31")
a("s_sub_u32 s51, s35, 16")
a("s_lshl_b32 s35, s51, 7")
a(f"s_add_u32 s35, s35, {WS_F}")
base_add(36, 28, "s35")
base_add(38, 36, 8 * 16384)
a("v_lshrrev_b32 v13, 3, v0")
a("v_lshlrev_b32 v13, 14, v13")
a("v_and_b32 v14, 7, v0")
a("v_lshl_add_u32 v13, v14, 4, v13")
a("global_store_dwordx4 v13, v[4:7], s[36:37] sc1")
a("s_mov_b32 exec_hi, 0x0000ffff")
a("global_store_dwordx4 v13, v[4:7], s[38:39] sc1")
a("s_mov_b32 exec_hi, -1")
a("s_lshl_b32 s35, s51, 2")
a(f"s_add_u32 s35, s35, {WS_R2}")
base_add(38, 28, "s35")
a("s_lshl_b32 s35, s30, 15")
a("s_sub_u32 s45, s31, 16")
a("s_lshl_b32 s46, s45, 7")
a("s_add_u32 s35, s35, s46")
a(f"s_add_u32 s35, s35, {WS_O}")
base_add(56, 28, "s35")
base_add(48, 56, 16384)
a("s_lshl_b32 s35, s30, 9")
a("s_lshr_b32 s45, s45, 3")
a("s_lshl_b32 s45, s45, 8")
a("s_add_u32 s35, s35, s45")
a(f"s_add_u32 s35, s35, {WS_S}")
base_add(52, 28, "s35")
a("v_and_b32 v100, 7, v0")
a("v_lshlrev_b32 v101, 4, v100")
a("v_lshlrev_b32 v100, 11, v100")
a("v_lshrrev_b32 v102, 3, v0")
a("v_lshl_add_u32 v100, v102, 4, v100")
a("v_lshlrev_b32 v102, 3, v102")
a("s_waitcnt lgkmcnt(0)")
make_tag()

def r2_store():
    a("v_mov_b32 v14, s34")
    a("s_mov_b64 exec, 1")
    a("global_store_dword v3, v14, s[38:39] sc1")
    a("s_mov_b64 exec, -1")

def o_gather():
    a("s_lshl_b32 s35, s30, 7")
    a(f"s_add_u32 s35, s35, {WS_R1}")
    base_add(62, 28, "s35")
    a("v_and_b32 v80, 15, v0")
    a("v_lshlrev_b32 v80, 2, v80")
    light(lambda: a("global_load_dword v81, v80, s[62:63] sc1"), lambda: a("v_cmp_ne_u32 vcc, s34, v81"), done_if_nz=False, slp=4)
    def ld():
        a(f"global_load_dwordx4 v[48:51], v101, s[52:53] sc1")
        a(f"global_load_dwordx4 v[52:55], v101, s[52:53] offset:128 sc1")
    def ck():
        a("v_cmp_eq_u32 vcc, s34, v49")
        a("v_cmp_eq_u32 s[54:55], s34, v53")
        a("s_or_b64 vcc, vcc, s[54:55]")
    light(ld, ck, done_if_nz=True)
    stamp(6)
    def issue():
        a(f"global_load_dwordx4 v[48:51], v101, s[52:53] sc1")
        a(f"global_load_dwordx4 v[52:55], v101, s[52:53] offset:128 sc1")
        a(f"global_load_dwordx4 v[40:43], v100, s[56:57] sc1")
        a(f"global_load_dwordx4 v[44:47], v100, s[48:49] sc1")
    def check():
        a(f"v_max3_u32 v90, v40, v41, v42")
        a(f"v_max3_u32 v91, v43, v44, v45")
        for i, r in enumerate((49, 51, 53, 55)):
            a(f"v_xor_b32 v{80+i}, s34, v{r}")
        a("v_max3_u32 v90, v90, v46, v47")
        a("v_or3_b32 v80, v80, v81, v82")
        a("v_max_u32 v90, v90, v91")
        a("v_or_b32 v80, v80, v83")
        a("v_cmp_eq_u32 vcc, -1, v90")
        a("v_cmp_ne_u32 s[54:55], 0, v80")
        a("s_or_b64 vcc, vcc, s[54:55]")
    pollm(issue, check)
    stamp(4)
    a(f"v_max_f32 v80, v48, v52")
    for pat in ["quad_perm:[1,0,3,2]", "quad_perm:[2,3,0,1]", "row_half_mirror"]:
        a(f"v_max_f32_dpp v80, v80, v80 {pat} row_mask:0xf bank_mask:0xf")
    a(f"v_sub_f32 v81, v48, v80"); a(f"v_sub_f32 v82, v52, v80")
    for i in range(2): a(f"v_mul_f32 v{81+i}, {hex(f2u(CEXP))}, v{81+i}")
    for i in range(2): a(f"v_exp_f32 v{81+i}, v{81+i}")
    a(f"v_mul_f32 v85, v81, v50")
    for k in range(4): a(f"v_mul_f32 v{86+k}, v81, v{40+k}")
    a(f"v_fmac_f32 v85, v82, v54")
    for k in range(4): a(f"v_fmac_f32 v{86+k}, v82, v{44+k}")
    for pat in ["quad_perm:[1,0,3,2]", "quad_perm:[2,3,0,1]", "row_half_mirror"]:
        for r in (85, 86, 87, 88, 89):
            a(f"v_add_f32_dpp v{r}, v{r}, v{r} {pat} row_mask:0xf bank_mask:0xf")
    a("v_rcp_f32 v85, v85")
    for k in range(4): a(f"v_mul_f32 v{86+k}, v{86+k}, v85")
    a("v_cvt_pk_bf16_f32 v86, v86, v87")
    a("v_cvt_pk_bf16_f32 v87, v88, v89")
    a(f"ds_write_b64 v102, v[86:87] offset:{OPAIR}")
    stamp(5)
    barrier()

def sum7(stride):
    for w in range(7):
        a(f"ds_read_b64 v[{16+2*w}:{17+2*w}], v13 offset:{PART+stride*w}")
    a("s_waitcnt lgkmcnt(0)")
    for k in range(2):
        a(f"v_add_f32 v{16+k}, v{16+k}, v{18+k}")
        a(f"v_add_f32 v{20+k}, v{20+k}, v{22+k}")
        a(f"v_add_f32 v{24+k}, v{24+k}, v{26+k}")
    for k in range(2):
        a(f"v_add_f32 v{16+k}, v{16+k}, v{20+k}")
        a(f"v_add_f32 v{24+k}, v{24+k}, v{28+k}")
    for k in range(2):
        a(f"v_add_f32 v{16+k}, v{16+k}, v{24+k}")

a("s_cmp_lt_u32 s31, 24")
a("s_cbranch_scc1 L_svYq")
a("s_cmp_lt_u32 s31, 31")
a("s_cbranch_scc1 L_svYm")
a("s_branch L_svYs")

a("L_svYq:")
a("s_waitcnt vmcnt(2)")
layernorm(8, 16, 24)
a("s_mov_b32 exec_hi, 0x00ffffff")
a(f"ds_write_b128 v2, v[8:11] offset:{XB}")
a("s_mov_b32 exec_hi, -1")
stamp(1)
barrier()
a("v_and_b32 v13, 31, v0")
a("v_lshlrev_b32 v13, 3, v13")
a("v_and_b32 v14, 15, v0")
a("v_mul_u32_u24 v12, 12, v14")
a("v_lshlrev_b32 v15, 4, v14")
a("v_lshrrev_b32 v14, 4, v0")
a("v_lshl_add_u32 v15, v14, 11, v15")
a("s_sub_u32 s35, s31, 16")
a("s_mul_i32 s35, s35, 192")
a("s_lshl_b32 s45, s30, 16")
a("s_add_u32 s35, s35, s45")
a(f"s_add_u32 s35, s35, {WS_Q}")
base_add(58, 28, "s35")
a("v_mov_b32 v35, s34")
a("s_waitcnt vmcnt(0)")
barrier()
sum7(256)
a("v_cvt_pk_bf16_f32 v30, v16, v17")
for k in range(3):
    a(f"ds_bpermute_b32 v{32+k}, v12, v30 offset:{4*k}")
a("s_mov_b32 exec_lo, 0x07ff07ff")
a("s_mov_b32 exec_hi, 0x07ff07ff")
a("s_waitcnt lgkmcnt(0)")
for k in range(QR // 4):
    a("global_store_dwordx4 v15, v[32:35], s[58:59] sc1")
    if k < QR // 4 - 1: base_add(58, 58, 8192)
a("s_mov_b64 exec, -1")
r2_store()
a("s_barrier")
stamp(2)
a("s_branch L_svOG")

a("L_svYm:")
a("s_mul_i32 s46, s30, 7")
a("s_add_u32 s46, s46, s31")
a("s_sub_u32 s46, s46, 24")
a("s_lshl_b32 s35, s46, 6")
a("v_and_b32 v13, 15, v0")
a("v_lshlrev_b32 v13, 2, v13")
a("v_add_u32 v13, s35, v13")
a("global_load_dword v44, v13, s[18:19]")
a("s_waitcnt vmcnt(3)")
layernorm(8, 16, 24)
layernorm(8, 16, 24)
a("s_mov_b32 exec_hi, 0x00ffffff")
a(f"ds_write_b128 v2, v[8:11] offset:{XB}")
a("s_mov_b32 exec_hi, -1")
stamp(1)
barrier()
a("s_waitcnt vmcnt(0)")
r2_store()
a("v_and_b32 v13, 15, v0")
a("v_lshlrev_b32 v14, 2, v13")
a("v_lshlrev_b32 v13, 3, v13")
barrier()
sum7(128)
a("v_cvt_pk_bf16_f32 v18, v16, v17")
a("v_lshlrev_b32 v16, 16, v18")
a("v_and_b32 v17, 0xffff0000, v18")
a("v_lshlrev_b32 v18, 16, v44")
a("v_and_b32 v19, 0xffff0000, v44")
a("v_add_f32 v16, v16, v18")
a("v_add_f32 v17, v17, v19")
a("v_cvt_pk_bf16_f32 v18, v16, v17")
a("v_lshlrev_b32 v16, 16, v18")
a("v_and_b32 v17, 0xffff0000, v18")
K0 = math.sqrt(2.0 / math.pi); K1 = 0.044715
c1 = -2.0 * K0 * math.log2(math.e); c3 = c1 * K1
a(f"v_mov_b32 v22, {hex(f2u(c1))}")
for k in range(2): a(f"v_mul_f32 v{18+k}, v{16+k}, v{16+k}")
for k in range(2): a(f"v_fmamk_f32 v{18+k}, v{18+k}, {hex(f2u(c3))}, v22")
for k in range(2): a(f"v_mul_f32 v{18+k}, v{18+k}, v{16+k}")
for k in range(2): a(f"v_exp_f32 v{18+k}, v{18+k}")
for k in range(2): a(f"v_add_f32 v{18+k}, 1.0, v{18+k}")
for k in range(2): a(f"v_rcp_f32 v{18+k}, v{18+k}")
for k in range(2): a(f"v_mul_f32 v{16+k}, v{16+k}, v{18+k}")
a("v_cvt_pk_bf16_f32 v16, v16, v17")
a(f"ds_write_b32 v14, v16 offset:{HB}")
stamp(2)
barrier()
a("s_branch L_svOG")

a("L_svYs:")
a("s_waitcnt vmcnt(0)")
r2_store()
a("L_svOG:")
o_gather()

a("L_fin:")
if PROFILE:
    a("s_cmp_lt_u32 s31, 16")
    a("s_cbranch_scc1 L_finX")
    for mp, lbl in ((STY, None), (STX, "L_finX")):
        if lbl: a(f"{lbl}:")
        cur_map[0] = mp
        stamp(7)
        a("s_waitcnt lgkmcnt(0) vmcnt(0)")
        for k in range(8):
            a(f"v_mov_b32 v{16+k}, s{mp[k]}")
        if not lbl: a("s_branch L_fin2")
    a("L_fin2:")
    a("s_lshl_b32 s35, s2, 3")
    a("s_add_u32 s35, s35, s3")
    a("s_lshl_b32 s35, s35, 6")
    a(f"s_add_u32 s35, s35, {WS_PROF}")
    base_add(60, 28, "s35")
    a("v_mov_b32 v13, 0")
    a("s_mov_b64 exec, 1")
    a("global_store_dwordx4 v13, v[16:19], s[60:61]")
    a("global_store_dwordx4 v13, v[20:23], s[60:61] offset:16")
a("L_end:")

open(OUT, "w").write(wrap(a.text(), 256, 512, LDS_BYTES, vgpr=128, sgpr=102))
print("wrote", OUT, len(a.lines), "lines")
```

```python
import sys, math, struct
sys.path.insert(0, "gen"); sys.path.insert(0, "exp")
from asmlib import Asm
from gen_common import wrap

PROFILE = "--prof" in sys.argv
def opt(name, default):
    for x in sys.argv:
        if x.startswith(f"--{name}="): return int(x.split("=")[1])
    return default
SLP = opt("slp", 2)
PSLP = opt("pslp", 0)
QSLP = opt("qslp", 1)
VA = opt("va", 4)
XD = opt("xd", 0)
FP = opt("fp", 3)
OP = opt("op", 2)
MD = opt("md", 0)
KW = opt("kw", 8)
MW = opt("mw", 0)
OUT = [x for x in sys.argv[1:] if not x.startswith("--")][0]

WS_R2  = 0x1000
WS_R1  = 0x2000
WS_P   = 0x3000
WS_S   = 0x20000
WS_O   = 0x80000
WS_F   = 0x100000
WS_Q   = 0x200000
WS_PROF = 0x8000000
QHS = 640
ZR = 0x500
SMAX = 0x700; LSUM = 0x740
OPAIR = 0x780
XB = 0x800
YB = 0xB80
HB = 0xF00
PART = 0xF80
FIN = 0xF80
OB = 0x1800
LDS_BYTES = 0x5800

CEXP = 0.0625 * math.log2(math.e)
def f2u(f): return struct.unpack("<I", struct.pack("<f", f))[0]

a = Asm()
STM = [96, 98, 100, 26, 0, 62, 50, 24]
def stamp(k):
    if PROFILE:
        r = STM[k]
        a(f"s_memrealtime s[{r}:{r+1}]")
def base_add(dst, src, offs):
    a(f"s_add_u32 s{dst}, s{src}, {offs}")
    a(f"s_addc_u32 s{dst+1}, s{src+1}, 0")
def barrier():
    a("s_waitcnt lgkmcnt(0)")
    a("s_barrier")
def guard(lp):
    a("s_add_u32 s44, s44, 1")
    a("s_cmp_gt_u32 s44, 0x40000")
    a(f"s_cbranch_scc0 {lp}")
def pollm(issue, check):
    lp = a.newlabel("L_pl"); dn = a.newlabel("L_pd")
    a.label(lp)
    issue()
    a(f"s_waitcnt vmcnt(0)")
    check()
    a(f"s_cbranch_vccz {dn}")
    a("s_mov_b64 exec, vcc")
    if PSLP: a(f"s_sleep {PSLP}")
    guard(lp)
    a.label(dn)
    a("s_mov_b64 exec, -1")
def polln(issue, check, nloads, sets, post):
    n = len(sets)
    lp = a.newlabel("L_pn"); end = a.newlabel("L_pe")
    dn = [a.newlabel("L_pk") for _ in sets]
    for b in sets[:-1]: issue(b)
    a.label(lp)
    for k in range(n):
        issue(sets[(k + n - 1) % n])
        a(f"s_waitcnt vmcnt({nloads*(n-1)})")
        check(sets[k])
        a(f"s_cbranch_vccz {dn[k]}")
    guard(lp)
    for k in reversed(range(n)):
        a.label(dn[k])
        post(sets[k])
        if k: a(f"s_branch {end}")
    a.label(end)
    a("s_nop 1")
def light(load, check, done_if_nz=True, slp=None):
    lp = a.newlabel("L_lt"); dn = a.newlabel("L_ld")
    slp = SLP if slp is None else slp
    a.label(lp)
    load()
    a("s_waitcnt vmcnt(0)")
    check()
    a(f"s_cbranch_vccnz {dn}" if done_if_nz else f"s_cbranch_vccz {dn}")
    if slp: a(f"s_sleep {slp}")
    guard(lp)
    a.label(dn)
def preperm(src_a, src_b, dst, n=4):
    for k in range(n):
        a(f"v_perm_b32 v{dst+2*k}, v{src_b+k}, v{src_a+k}, s32")
        a(f"v_perm_b32 v{dst+2*k+1}, v{src_b+k}, v{src_a+k}, s33")
def dots(acc, pp, coef, n=8, first=False):
    for k in range(n):
        c = "0" if first else f"v{acc+k}"
        a(f"v_dot2_f32_bf16 v{acc+k}, v{pp+k}, {coef}, {c}")
def reduce_hi(acc, extra_ror):
    for k in range(4): a(f"v_permlane32_swap_b32 v{acc+k}, v{acc+k+4}")
    for k in range(4): a(f"v_add_f32 v{acc+k}, v{acc+k}, v{acc+k+4}")
    for k in range(2): a(f"v_permlane16_swap_b32 v{acc+k}, v{acc+k+2}")
    for k in range(2): a(f"v_add_f32 v{acc+k}, v{acc+k}, v{acc+k+2}")
    for r in extra_ror:
        for k in range(2):
            a(f"v_add_f32_dpp v{acc+k}, v{acc+k}, v{acc+k} row_ror:{r} row_mask:0xf bank_mask:0xf")
def red1(op, d, src, full=False):
    for pat in ["quad_perm:[1,0,3,2]", "quad_perm:[2,3,0,1]", "row_half_mirror", "row_mirror"]:
        a(f"{op}_dpp v{d}, v{src}, v{src} {pat} row_mask:0xf bank_mask:0xf")
        src = d
    a(f"{op}_dpp v{d}, v{d}, v{d} row_bcast:15 row_mask:0xa bank_mask:0xf")
    if full: a(f"{op}_dpp v{d}, v{d}, v{d} row_bcast:31 row_mask:0xc bank_mask:0xf")
def wave_sum_to_sgpr(v, sdst):
    red1("v_add_f32", v, v, full=True)
    a(f"v_readlane_b32 s{sdst}, v{v}, 63")

def layernorm(pk, f, t):
    for k in range(4):
        a(f"v_lshlrev_b32 v{f+2*k}, 16, v{pk+k}")
        a(f"v_and_b32 v{f+2*k+1}, 0xffff0000, v{pk+k}")
    a(f"v_add_f32 v{t}, v{f}, v{f+1}")
    a(f"v_add_f32 v{t+1}, v{f+2}, v{f+3}")
    a(f"v_add_f32 v{t+2}, v{f+4}, v{f+5}")
    a(f"v_add_f32 v{t+3}, v{f+6}, v{f+7}")
    a(f"v_add_f32 v{t}, v{t}, v{t+1}")
    a(f"v_add_f32 v{t+2}, v{t+2}, v{t+3}")
    a(f"v_add_f32 v{t}, v{t}, v{t+2}")
    wave_sum_to_sgpr(t, 35)
    a(f"v_mov_b32 v{t+1}, {hex(f2u(1.0/448))}")
    a(f"v_mul_f32 v{t+2}, s35, v{t+1}")
    a(f"v_mov_b32 v{t}, 0")
    a(f"v_mov_b32 v{t+5}, 0")
    a("s_mov_b32 exec_hi, 0x00ffffff")
    for k in range(0, 8, 2):
        a(f"v_sub_f32 v{t+3}, v{f+k}, v{t+2}")
        a(f"v_sub_f32 v{t+4}, v{f+k+1}, v{t+2}")
        a(f"v_fmac_f32 v{t}, v{t+3}, v{t+3}")
        a(f"v_fmac_f32 v{t+5}, v{t+4}, v{t+4}")
    a("s_mov_b32 exec_hi, -1")
    a(f"v_add_f32 v{t}, v{t}, v{t+5}")
    wave_sum_to_sgpr(t, 35)
    a(f"v_mul_f32 v{t+3}, s35, v{t+1}")
    a(f"v_cvt_pk_bf16_f32 v{t+4}, v{t+2}, v{t+3}")
    a(f"v_lshlrev_b32 v{t+2}, 16, v{t+4}")
    a(f"v_and_b32 v{t+3}, 0xffff0000, v{t+4}")
    a(f"v_add_f32 v{t+3}, {hex(f2u(1e-5))}, v{t+3}")
    a(f"v_cvt_pk_bf16_f32 v{t+3}, v{t+3}, v{t+3}")
    a(f"v_lshlrev_b32 v{t+3}, 16, v{t+3}")
    a(f"v_sqrt_f32 v{t+3}, v{t+3}")
    for k in range(8):
        a(f"v_sub_f32 v{f+k}, v{f+k}, v{t+2}")
    a(f"v_cvt_pk_bf16_f32 v{t+3}, v{t+3}, v{t+3}")
    a(f"v_lshlrev_b32 v{t+3}, 16, v{t+3}")
    a(f"v_rcp_f32 v{t+4}, v{t+3}")
    for k in range(4):
        a(f"v_cvt_pk_bf16_f32 v{pk+k}, v{f+2*k}, v{f+2*k+1}")
    for k in range(4):
        a(f"v_lshlrev_b32 v{f+2*k}, 16, v{pk+k}")
        a(f"v_and_b32 v{f+2*k+1}, 0xffff0000, v{pk+k}")
    for k in range(8):
        a(f"v_mul_f32 v{t}, v{f+k}, v{t+4}")
        a(f"v_fma_f32 v{t+1}, -v{t}, v{t+3}, v{f+k}")
        a(f"v_fma_f32 v{f+k}, v{t+1}, v{t+4}, v{t}")
    for k in range(4):
        a(f"v_cvt_pk_bf16_f32 v{pk+k}, v{f+2*k}, v{f+2*k+1}")
    a("s_mov_b32 exec_lo, 0")
    a("s_mov_b32 exec_hi, 0xff000000")
    for k in range(4): a(f"v_mov_b32 v{pk+k}, 0")
    a("s_mov_b64 exec, -1")

def load_tag(): a("s_load_dword s34, s[28:29], 0")
def make_tag():
    a("s_mul_i32 s34, s34, 1664525")
    a("s_add_u32 s34, s34, 1013904223")

stamp(0)
a("s_cmp_ge_u32 s2, 256")
a("s_cbranch_scc1 L_end")
a("s_load_dwordx16 s[4:19], s[0:1], 0")
a("s_load_dwordx8 s[20:27], s[0:1], 64")
a("s_load_dwordx2 s[28:29], s[0:1], 96")
a("v_lshrrev_b32 v1, 6, v0")
a("v_and_b32 v0, 63, v0")
a("v_readfirstlane_b32 s3, v1")
a("s_and_b32 s30, s2, 7")
a("s_lshr_b32 s31, s2, 3")
a("s_add_u32 s3, s3, 7")
a("s_and_b32 s3, s3, 7")
a("s_mov_b32 s32, 0x05040100")
a("s_mov_b32 s33, 0x07060302")
a("s_mov_b32 s44, 0")
if PROFILE:
    for r in (98, 100, 62, 50): a(f"s_mov_b32 s{r}, 0")
a("s_cmp_eq_u32 s3, 7")
a("s_cbranch_scc1 L_service")
a("s_cmp_lt_u32 s31, 16")
a("s_cbranch_scc1 L_X")
a("s_cmp_lt_u32 s31, 24")
a("s_cbranch_scc1 L_Yq")
a("s_cmp_lt_u32 s31, 31")
a("s_cbranch_scc1 L_Ym")
a("s_branch L_Ys")

def prof_zero():
    if PROFILE:
        a("s_mov_b32 s26, 0"); a("s_mov_b32 s0, 0")

def tile_off():
    a("s_lshl_b32 s35, s35, 13")
    a("s_lshl_b32 s45, s30, 22")
    a("s_add_u32 s35, s35, s45")
    a("s_add_u32 s35, s35, 0x300000")
def tile_bases():
    base_add(36, 6, "s35")
    base_add(38, 36, 4096)
    base_add(40, 8, "s35")
    base_add(42, 40, 4096)
def k_voff():
    a("v_and_b32 v2, 7, v0")
    a("v_lshlrev_b32 v2, 9, v2")
    a("v_lshrrev_b32 v3, 3, v0")
    a("v_lshl_add_u32 v2, v3, 4, v2")
    a("v_lshlrev_b32 v3, 4, v0")
def k_loads():
    for oct in range(2):
        for ls in range(4):
            r = 32 + (oct * 4 + ls) * 4
            a(f"global_load_dwordx4 v[{r}:{r+3}], v2, s[{36+2*oct}:{37+2*oct}] offset:{ls*128} nt")
def v_loads(k0, k1):
    for k in range(k0, k1):
        b = 40 if k < 4 else 42
        a(f"global_load_dwordx4 v[{64+4*k}:{67+4*k}], v3, s[{b}:{b+1}] offset:{(k%4)*1024} nt")
def tile_pre():
    a("v_and_b32 v6, 1, v0")
    a(f"v_mul_u32_u24 v6, {QHS}, v6")
    a("v_lshrrev_b32 v7, 4, v0")
    a("v_lshlrev_b32 v7, 5, v7")
    a("v_bfe_u32 v8, v0, 1, 1")
    a("v_lshl_add_u32 v7, v8, 4, v7")
    a(f"v_add_u32 v6, v6, v7")
    a(f"v_add_u32 v7, {ZR}, v7")
    a("v_bfe_u32 v8, v0, 2, 2")
    a("v_cmp_eq_u32 vcc, 0, v8")
    a("v_cndmask_b32 v4, v7, v6, vcc")
    a("v_cmp_eq_u32 vcc, 1, v8")
    a("v_cndmask_b32 v5, v7, v6, vcc")
    a("v_mov_b32 v15, 0xff800000")
    a("s_mov_b32 s46, 0x00ff00ff")
    a("s_mov_b32 s47, 0x00ff00ff")
    a("v_lshrrev_b32 v31, 5, v0")
    a("v_lshlrev_b32 v29, 5, v31")
    a("s_lshl_b32 s35, s3, 2")
    a("v_add_u32 v28, s35, v29")
    a("v_lshlrev_b32 v31, 2, v31")
    a("s_lshl_b32 s35, s3, 11")
    a("v_lshl_add_u32 v30, v0, 5, s35")
def gather_pre():
    a("s_lshl_b32 s35, s31, 11")
    a("s_lshl_b32 s45, s30, 16")
    a("s_add_u32 s35, s35, s45")
    a(f"s_add_u32 s45, s35, {WS_O}")
    base_add(56, 28, "s45")
    a(f"s_add_u32 s35, s35, {WS_Q}")
    a("s_mul_i32 s45, s3, 192")
    a("s_add_u32 s35, s35, s45")
    base_add(58, 28, "s35")
    a("s_lshr_b32 s35, s3, 2")
    a(f"s_mul_i32 s35, s35, {QHS}")
    a("s_and_b32 s45, s3, 3")
    a("s_lshl_b32 s45, s45, 7")
    a("s_add_u32 s35, s35, s45")
    a("v_lshl_add_u32 v19, v0, 2, s35")
    a("s_lshl_b32 s35, s3, 8")
    a("v_lshl_add_u32 v17, v0, 2, s35")
WIN = [8, 64, 80]
def sq_issue():
    for k in range(3):
        a(f"s_load_dwordx16 s[{WIN[k]}:{WIN[k]+15}], s[58:59], {64*k} glc")
def sq_finish():
    lp = a.newlabel("L_sq"); rt = a.newlabel("L_sqr"); dn = a.newlabel("L_sqd")
    a.label(lp)
    a("s_waitcnt lgkmcnt(0)")
    for gi in range(11):
        r = WIN[gi // 4] + 4 * (gi % 4) + 3
        a(f"s_cmp_lg_u32 s{r}, s34")
        a(f"s_cbranch_scc1 {rt}")
    a(f"s_branch {dn}")
    a.label(rt)
    if QSLP: a(f"s_sleep {QSLP}")
    sq_issue()
    guard(lp)
    a("s_waitcnt lgkmcnt(0)")
    a.label(dn)
    for i in range(32):
        gi, k = divmod(i, 3)
        r = WIN[gi // 4] + 4 * (gi % 4) + k
        a(f"v_writelane_b32 v8, s{r}, {i}")
    a("s_mov_b32 exec_hi, 0")
    a("ds_write_b32 v19, v8")
    a("s_mov_b32 exec_hi, -1")
    barrier()
def tile_main(mid=None, extra=0, ptmp=(112, 120), stmp=112):
    for oct in range(2):
        for ls in range(4):
            r = 96 + (oct * 4 + ls) * 4
            a(f"ds_read_b128 v[{r}:{r+3}], v{4+oct} offset:{ls*128}")
    a(f"s_waitcnt vmcnt(8) lgkmcnt(0)")
    stamp(2)
    first = True
    for oct in range(2):
        for ls in range(4):
            ra = 96 + (oct * 4 + ls) * 4; rb = 32 + (oct * 4 + ls) * 4
            a(f"v_mfma_f32_16x16x32_bf16 v[8:11], v[{ra}:{ra+3}], v[{rb}:{rb+3}], {'0' if first else 'v[8:11]'}")
            first = False
    if mid: mid()
    a("v_add_f32_dpp v12, v10, v8 row_ror:8 row_mask:0xf bank_mask:0xf")
    a("v_add_f32_dpp v13, v11, v9 row_ror:8 row_mask:0xf bank_mask:0xf")
    a("v_permlane32_swap_b32 v12, v13")
    a("v_cvt_pk_bf16_f32 v12, v12, v12")
    a("v_lshlrev_b32 v12, 16, v12")
    a("v_cndmask_b32 v12, v15, v12, s[46:47]")
    red1("v_max_f32", 16, 12)
    a("s_mov_b32 exec_lo, 0x10000")
    a("s_mov_b32 exec_hi, 0x10000")
    a(f"ds_write_b32 v28, v16 offset:{SMAX}")
    a("s_mov_b64 exec, -1")
    barrier()
    z = stmp
    a(f"ds_read_b128 v[{z}:{z+3}], v29 offset:{SMAX}")
    a(f"ds_read_b128 v[{z+4}:{z+7}], v29 offset:{SMAX+16}")
    a("s_waitcnt lgkmcnt(0)")
    a(f"v_max3_f32 v{z}, v{z}, v{z+1}, v{z+2}")
    a(f"v_max3_f32 v{z+3}, v{z+3}, v{z+4}, v{z+5}")
    a(f"v_max3_f32 v{z}, v{z}, v{z+6}, v{z+7}")
    a(f"v_max_f32 v{z}, v{z}, v{z+3}")
    a(f"v_sub_f32 v12, v12, v{z}")
    a(f"v_mul_f32 v12, {hex(f2u(CEXP))}, v12")
    a("v_exp_f32 v12, v12")
    a("v_mov_b32_dpp v14, v12 quad_perm:[2,3,0,1] row_mask:0xf bank_mask:0xf")
    a("v_cvt_pk_bf16_f32 v14, v12, v14")
    for m, L in enumerate((0, 4, 16, 20)):
        a(f"ds_bpermute_b32 v{48+m}, v31, v14 offset:{4*L}")
        a(f"ds_bpermute_b32 v{52+m}, v31, v14 offset:{4*(L+32)}")
    red1("v_add_f32", 16, 12)
    a("s_mov_b32 exec_lo, 0x10000")
    a("s_mov_b32 exec_hi, 0x10000")
    a(f"ds_write_b32 v28, v16 offset:{LSUM}")
    a("s_mov_b64 exec, -1")
    a("s_waitcnt lgkmcnt(0)")
    stamp(3)
    for m in range(4):
        a(f"s_waitcnt vmcnt({6-2*m+extra})")
        ra = 64 + 8 * m; rb = ra + 4
        t = ptmp[m & 1]
        preperm(ra, rb, t, n=4)
        dots(32, t, f"v{48+m}", n=8, first=(m == 0))
        dots(40, t, f"v{52+m}", n=8, first=(m == 0))
    stamp(4)
    for k in range(8): a(f"v_permlane32_swap_b32 v{32+k}, v{40+k}")
    for k in range(8): a(f"v_add_f32 v{32+k}, v{32+k}, v{40+k}")
    a(f"ds_write_b128 v30, v[32:35] offset:{OB}")
    a(f"ds_write_b128 v30, v[36:39] offset:{OB+16}")
def combine(nt):
    s0 = 0
    o0 = OB // 256
    n2 = (nt + 1) // 2
    for k in range(n2):
        if 2 * k + 1 < nt:
            a(f"ds_read2st64_b32 v[{8+2*k}:{9+2*k}], v17 offset0:{o0+16*k+8*s0} offset1:{o0+16*k+8+8*s0}")
        else:
            a(f"ds_read_b32 v{8+2*k}, v17 offset:{OB+2048*2*k}")
    a("s_waitcnt lgkmcnt(0)")
    vals = list(range(8, 8 + nt))
    while len(vals) > 1:
        nxt = []
        for k in range(0, len(vals) - 1, 2):
            a(f"v_add_f32 v{vals[k]}, v{vals[k]}, v{vals[k+1]}")
            nxt.append(vals[k])
        if len(vals) % 2: nxt.append(vals[-1])
        vals = nxt
    a("v_min_u32 v8, -2, v8")
    a("global_store_dword v17, v8, s[56:57] sc1")

def final_pre():
    a("s_min_u32 s35, s31, 1")
    a("s_lshl_b32 s45, s30, 1")
    a("s_add_u32 s45, s45, s35")
    a("s_min_u32 s45, s45, 13")
    a("v_and_b32 v20, 31, v0")
    a("s_lshl_b32 s35, s45, 5")
    a("v_add_u32 v20, s35, v20")
    a("v_lshlrev_b32 v20, 1, v20")
    a("s_lshl_b32 s35, s45, 14")
    a("s_lshl_b32 s45, s3, 11")
    a("s_add_u32 s35, s35, s45")
    a(f"s_add_u32 s35, s35, {WS_F}")
    base_add(52, 28, "s35")
    a("s_lshl_b32 s35, s3, 6")
    a(f"s_add_u32 s35, s35, {WS_R2}")
    base_add(48, 28, "s35")
def final_gather():
    a("s_cmp_lt_u32 s31, 2")
    a(f"s_cbranch_scc0 L_fin")
    a("s_cmp_lt_u32 s30, 7")
    a(f"s_cbranch_scc0 L_fin")
    a("v_lshlrev_b32 v3, 4, v0")
    a("v_and_b32 v24, 15, v0")
    a("v_lshlrev_b32 v24, 2, v24")
    a("v_and_b32 v25, 7, v0")
    a("v_lshlrev_b32 v25, 4, v25")
    a("v_lshrrev_b32 v26, 4, v0")
    a("v_lshl_add_u32 v25, v26, 2, v25")
    a("s_lshl_b32 s35, s3, 7")
    a("v_add_u32 v25, s35, v25")
    light(lambda: a(f"global_load_dword v48, v24, s[48:49] sc1"), lambda: a(f"v_cmp_ne_u32 vcc, s34, v48"), done_if_nz=False, slp=0)
    def f_issue2(b):
        a(f"global_load_dwordx4 v[{b}:{b+3}], v3, s[52:53] sc1")
        a(f"global_load_dwordx4 v[{b+4}:{b+7}], v3, s[52:53] offset:1024 sc1")
    def f_check2(b):
        a(f"v_max3_u32 v50, v{b}, v{b+1}, v{b+2}")
        a(f"v_max3_u32 v51, v{b+3}, v{b+4}, v{b+5}")
        a(f"v_max3_u32 v50, v50, v{b+6}, v{b+7}")
        a("v_max_u32 v50, v50, v51")
        a("v_cmp_eq_u32 vcc, -1, v50")
    def f_post(b):
        for k in range(4): a(f"v_add_f32 v{40+k}, v{b+k}, v{b+4+k}")
    polln(f_issue2, f_check2, 2, [56 + 8 * k for k in range(FP)], f_post)
    a("v_permlane32_swap_b32 v40, v42")
    a("v_permlane32_swap_b32 v41, v43")
    a("v_add_f32 v40, v40, v42")
    a("v_add_f32 v41, v41, v43")
    a("v_permlane16_swap_b32 v40, v41")
    a("v_add_f32 v40, v40, v41")
    a(f"v_add_f32_dpp v40, v40, v40 row_ror:8 row_mask:0xf bank_mask:0xf")
    a(f"ds_write_b32 v25, v40 offset:{FIN}")
    barrier()

a("L_X:")
a("s_mul_i32 s35, s31, 7")
a("s_add_u32 s35, s35, s3")
tile_off()
k_voff()
a("s_waitcnt lgkmcnt(0)")
tile_bases()
if not XD: k_loads()
load_tag()
prof_zero()
tile_pre()
gather_pre()
final_pre()
a("s_waitcnt lgkmcnt(0)")
make_tag()
if XD:
    a("s_barrier")
    k_loads()
a("s_barrier")
if KW < 8: a(f"s_waitcnt vmcnt({KW})")
v_loads(0, VA)
sq_issue()
v_loads(VA, 8)
stamp(1)
sq_finish()
tile_main()
barrier()
combine(7)
stamp(5)
final_gather()
a("s_branch L_fin")

def gemv_loads(ptr, row_sgpr, dst):
    a(f"s_mul_i32 s35, {row_sgpr}, 896")
    a("s_lshl_b32 s45, s3, 7")
    a("s_add_u32 s35, s35, s45")
    base_add(38, ptr, "s35")
    a("v_lshrrev_b32 v6, 3, v0")
    a("v_mul_u32_u24 v6, 3584, v6")
    a("v_and_b32 v7, 7, v0")
    a("v_lshl_add_u32 v6, v7, 4, v6")
    for i in range(4):
        a(f"global_load_dwordx4 v[{dst+4*i}:{dst+4*i+3}], v6, s[38:39] offset:{896*i} nt")
def publish_final_addr():
    a("s_lshl_b32 s35, s30, 4")
    a("s_add_u32 s35, s35, s31")
    a("s_sub_u32 s35, s35, 16")
    a("s_lshl_b32 s35, s35, 7")
    a("s_lshl_b32 s45, s3, 15")
    a("s_add_u32 s35, s35, s45")
    a(f"s_add_u32 s35, s35, {WS_F}")
    base_add(36, 28, "s35")
    a("v_bfe_u32 v6, v0, 2, 1")
    a("v_lshlrev_b32 v6, 14, v6")
    a("v_and_b32 v7, 3, v0")
    a("v_lshl_add_u32 v6, v7, 5, v6")
    a("v_lshrrev_b32 v7, 4, v0")
    a("v_lshl_add_u32 v6, v7, 3, v6")
def publish_final_store(acc):
    a(f"v_min_u32 v{acc}, -2, v{acc}")
    a(f"v_min_u32 v{acc+1}, -2, v{acc+1}")
    a("s_mov_b32 exec_lo, 0x00ff00ff")
    a("s_mov_b32 exec_hi, 0x00ff00ff")
    a(f"global_store_dwordx2 v6, v[{acc}:{acc+1}], s[36:37] sc1")
    a("s_mov_b64 exec, -1")
def wo_loads64(ptr, dst):
    a("s_lshl_b32 s48, s30, 9")
    a("s_sub_u32 s49, s31, 16")
    a("s_lshl_b32 s49, s49, 6")
    a("s_add_u32 s48, s48, s49")
    a(f"s_mul_i32 s35, s48, 896")
    a("s_lshl_b32 s45, s3, 7")
    a("s_add_u32 s35, s35, s45")
    base_add(38, ptr, "s35")
    base_add(60, 38, 3584)
    a("v_lshrrev_b32 v6, 3, v0")
    a("v_mul_u32_u24 v6, 7168, v6")
    a("v_and_b32 v7, 7, v0")
    a("v_lshl_add_u32 v6, v7, 4, v6")
    for i in range(8):
        b = 38 if i < 4 else 60
        a(f"global_load_dwordx4 v[{dst+4*i}:{dst+4*i+3}], v6, s[{b}:{b+1}] offset:{896*(i%4)} nt")

a("L_Yq:")
a("L_Ym:")
a("L_Ys:")
a("s_sub_u32 s46, s31, 16")
a("s_lshr_b32 s47, s46, 3")
a("s_mul_i32 s48, s47, 224")
a("s_lshl_b32 s45, s3, 5")
a("s_add_u32 s48, s48, s45")
a("s_lshl_b32 s35, s48, 13")
a("s_lshl_b32 s45, s30, 10")
a("s_add_u32 s35, s35, s45")
a("s_and_b32 s45, s46, 7")
a("s_lshl_b32 s45, s45, 7")
a("s_add_u32 s35, s35, s45")
a("v_lshrrev_b32 v6, 3, v0")
a("v_lshlrev_b32 v9, 3, v6")
a("v_lshlrev_b32 v6, 15, v6")
a("v_and_b32 v7, 7, v0")
a("v_lshl_add_u32 v6, v7, 4, v6")
a("s_waitcnt lgkmcnt(0)")
base_add(36, 10, "s35")
a("s_barrier")
for i in range(4):
    a(f"global_load_dwordx4 v[{96+4*i}:{99+4*i}], v6, s[36:37] nt")
    if i < 3: base_add(36, 36, 8192)
load_tag()
prof_zero()
a("s_lshl_b32 s35, s48, 1")
a("v_add_u32 v9, s35, v9")
a("v_and_b32 v7, 7, v0")
a("v_lshlrev_b32 v7, 5, v7")
a("v_lshrrev_b32 v8, 4, v0")
a("v_lshl_add_u32 v7, v8, 3, v7")
a("s_lshl_b32 s35, s3, 8")
a("v_add_u32 v7, s35, v7")
k_voff()
a("s_and_b32 s35, s46, 7")
a("s_lshl_b32 s35, s35, 1")
a("s_min_u32 s45, s3, 1")
a("s_add_u32 s35, s35, s45")
a("s_add_u32 s35, s35, 112")
tile_off()
tile_bases()
a("s_mov_b64 s[6:7], s[12:13]")
gather_pre()
a("s_waitcnt lgkmcnt(0)")
make_tag()
barrier()
a(f"ds_read_b64 v[28:29], v9 offset:{XB}")
for k in range(2):
    a(f"s_waitcnt vmcnt({2-2*k}) lgkmcnt(0)")
    t = 112 + 8 * k
    preperm(96 + 8 * k, 100 + 8 * k, t)
    dots(20, t, f"v{28+k}", first=(k == 0))
reduce_hi(20, [8])
a(f"ds_write_b64 v7, v[20:21] offset:{PART}")
stamp(1)
barrier()
a("s_cmp_lt_u32 s31, 24")
a("s_cbranch_scc0 L_Ym2")
a("s_cmp_lt_u32 s3, 2")
a("s_cbranch_scc0 L_Yq_notile")
tile_pre()
a("s_barrier")
k_loads()
v_loads(0, 8)
sq_issue()
sq_finish()
tile_main(lambda: wo_loads64(6, 96), 8, ptmp=(56, 56), stmp=56)
a("s_branch L_Yq_comb")
a("L_Yq_notile:")
a("s_barrier")
wo_loads64(6, 96)
sq_issue()
sq_finish()
barrier()
a("L_Yq_comb:")
barrier()
combine(2)
a("s_waitcnt vmcnt(0)")
for k in range(4):
    preperm(96 + 8 * k, 100 + 8 * k, 32 + 8 * k)
publish_final_addr()
a("v_lshrrev_b32 v8, 3, v0")
a("v_lshlrev_b32 v8, 4, v8")
stamp(5)
barrier()
a(f"ds_read_b128 v[12:15], v8 offset:{OPAIR}")
a("s_waitcnt lgkmcnt(0)")
for k in range(4):
    dots(20, 32 + 8 * k, f"v{12+k}", first=(k == 0))
reduce_hi(20, [8])
publish_final_store(20)
stamp(6)
a("s_branch L_fin")
a("L_Ym2:")
a("s_cmp_eq_u32 s31, 31")
a("s_cbranch_scc1 L_fin")
a("s_mul_i32 s46, s30, 7")
a("s_add_u32 s46, s46, s31")
a("s_sub_u32 s46, s46, 24")
a("s_mul_i32 s35, s3, 229376")
a("s_lshl_b32 s45, s46, 6")
a("s_add_u32 s35, s35, s45")
a("v_lshrrev_b32 v10, 2, v0")
a("v_mul_u32_u24 v10, 14336, v10")
a("v_and_b32 v7, 3, v0")
a("v_lshl_add_u32 v10, v7, 4, v10")
base_add(36, 16, "s35")
a("v_lshrrev_b32 v9, 2, v0")
a("v_lshlrev_b32 v9, 3, v9")
a("s_lshl_b32 s35, s3, 7")
a("v_add_u32 v9, s35, v9")
a("v_and_b32 v7, 3, v0")
a("v_lshlrev_b32 v7, 5, v7")
a("v_lshrrev_b32 v8, 4, v0")
a("v_lshl_add_u32 v7, v8, 3, v7")
a("v_add_u32 v12, s35, v7")
barrier()
for i in range(4):
    a(f"global_load_dwordx4 v[{64+4*i}:{67+4*i}], v10, s[36:37] offset:{3584*(i%2)} nt")
    if i == 1: base_add(36, 36, 7168)
a(f"ds_read_b64 v[28:29], v9 offset:{YB}")
a("s_barrier")
a("s_lshl_b32 s46, s46, 5")
gemv_loads(20, "s46", 32)
for k in range(2):
    a(f"s_waitcnt vmcnt({6-2*k}) lgkmcnt(0)")
    t = 96 + 8 * k
    preperm(64 + 8 * k, 68 + 8 * k, t)
    dots(20, t, f"v{28+k}", first=(k == 0))
reduce_hi(20, [8, 4])
a(f"ds_write_b64 v12, v[20:21] offset:{PART}")
a("v_lshrrev_b32 v8, 3, v0")
a("v_lshlrev_b32 v8, 3, v8")
barrier()
a("s_waitcnt vmcnt(0)")
preperm(32, 36, 112)
preperm(40, 44, 120)
publish_final_addr()
stamp(5)
barrier()
a(f"ds_read_b64 v[10:11], v8 offset:{HB}")
a("s_waitcnt lgkmcnt(0)")
dots(20, 112, "v10", first=True)
dots(20, 120, "v11")
reduce_hi(20, [8])
publish_final_store(20)
stamp(6)
a("s_branch L_fin")

a("L_service:")
a("v_lshlrev_b32 v2, 4, v0")
a("v_mov_b32 v3, 0")
for k in range(4): a(f"v_mov_b32 v{4+k}, -1")
for k in range(4): a(f"v_mov_b32 v{8+k}, 0")
a("s_waitcnt lgkmcnt(0)")
a("s_cmp_lt_u32 s31, 16")
a("s_cbranch_scc1 L_sv_nox")
a("s_mov_b32 exec_hi, 0x00ffffff")
a("global_load_dwordx4 v[8:11], v2, s[4:5]")
a("s_mov_b32 exec_hi, -1")
a("s_barrier")
a("L_sv_nox:")
load_tag()
prof_zero()
gather_pre()
a("s_cmp_lt_u32 s31, 24")
a("s_cbranch_scc0 L_sv_noo")
a("global_store_dwordx4 v2, v[4:7], s[56:57] sc1")
a("global_store_dwordx4 v2, v[4:7], s[56:57] offset:1024 sc1")
a("L_sv_noo:")
a("s_lshl_b32 s35, s30, 4")
a("s_add_u32 s35, s35, s31")
a("s_max_u32 s35, s35, 16")
a("s_sub_u32 s47, s35, 16")
a("s_cmp_lt_u32 s31, 16")
a("s_cbranch_scc1 L_sv_nof")
a("s_lshl_b32 s35, s47, 7")
a(f"s_add_u32 s35, s35, {WS_F}")
base_add(36, 28, "s35")
base_add(38, 36, 8 * 16384)
a("v_lshrrev_b32 v13, 3, v0")
a("v_lshlrev_b32 v13, 14, v13")
a("v_and_b32 v14, 7, v0")
a("v_lshl_add_u32 v13, v14, 4, v13")
a("s_cmp_eq_u32 s31, 31")
a("s_cselect_b32 s35, 0, -1")
for k in range(4): a(f"v_mov_b32 v{4+k}, s35")
a("global_store_dwordx4 v13, v[4:7], s[36:37] sc1")
a("s_mov_b32 exec_hi, 0x0000ffff")
a("global_store_dwordx4 v13, v[4:7], s[38:39] sc1")
a("s_mov_b32 exec_hi, -1")
a("L_sv_nof:")
a("v_lshlrev_b32 v13, 3, v0")
a("v_mov_b32 v14, 0"); a("v_mov_b32 v15, 0")
a(f"ds_write_b64 v13, v[14:15] offset:{ZR}")
a("v_lshlrev_b32 v13, 2, v0")
a("v_mov_b32 v16, 0xff800000")
a("v_cmp_gt_u32 vcc, 16, v0")
a("v_cndmask_b32 v16, v14, v16, vcc")
a("s_mov_b32 exec_hi, 0")
a(f"ds_write_b32 v13, v16 offset:{SMAX}")
a("s_mov_b64 exec, -1")
a("s_lshl_b32 s35, s47, 2")
a(f"s_add_u32 s35, s35, {WS_R2}")
base_add(38, 28, "s35")
a("s_lshl_b32 s35, s30, 7")
a(f"s_add_u32 s35, s35, {WS_R1}")
base_add(40, 28, "s35")
a("s_lshl_b32 s35, s30, 10")
a("s_lshl_b32 s45, s31, 4")
a("s_add_u32 s35, s35, s45")
a(f"s_add_u32 s35, s35, {WS_S}")
base_add(42, 28, "s35")
a("v_and_b32 v36, 1, v0")
a("v_lshlrev_b32 v37, 9, v36")
a("v_lshlrev_b32 v36, 5, v36")
a("s_waitcnt lgkmcnt(0)")
make_tag()

def flags_store(r1, r2):
    a("v_mov_b32 v14, s34")
    a("s_lshl_b32 s35, s31, 2")
    a("v_mov_b32 v13, s35")
    a("s_mov_b64 exec, 1")
    if r1: a("global_store_dword v13, v14, s[40:41] sc1")
    if r2: a("global_store_dword v3, v14, s[38:39] sc1")
    a("s_mov_b64 exec, -1")
def stats_publish():
    a(f"ds_read_b128 v[20:23], v36 offset:{SMAX}")
    a(f"ds_read_b128 v[24:27], v36 offset:{SMAX+16}")
    a(f"ds_read_b128 v[28:31], v36 offset:{LSUM}")
    a(f"ds_read_b128 v[32:35], v36 offset:{LSUM+16}")
    a("s_waitcnt lgkmcnt(0)")
    a("v_max3_f32 v40, v20, v21, v22")
    a("v_max3_f32 v23, v23, v24, v25")
    a("v_add_f32 v28, v28, v29"); a("v_add_f32 v30, v30, v31"); a("v_add_f32 v32, v32, v33"); a("v_add_f32 v34, v34, v35")
    a("v_max3_f32 v40, v40, v26, v27")
    a("v_add_f32 v28, v28, v30"); a("v_add_f32 v32, v32, v34")
    a("v_max_f32 v40, v40, v23")
    a("v_add_f32 v42, v28, v32")
    a("v_mov_b32 v41, s34")
    a("v_mov_b32 v43, s34")
    a("s_mov_b64 exec, 3")
    a("global_store_dwordx4 v37, v[40:43], s[42:43] sc1")
    a("s_mov_b64 exec, -1")
def o_gather_pre():
    a("s_lshl_b32 s35, s30, 16")
    a("s_sub_u32 s45, s31, 16")
    a("s_lshl_b32 s46, s45, 8")
    a("s_add_u32 s35, s35, s46")
    a(f"s_add_u32 s35, s35, {WS_O}")
    base_add(60, 28, "s35")
    base_add(46, 60, 16384)
    base_add(48, 60, 32768)
    a("s_lshl_b32 s35, s30, 10")
    a("s_lshr_b32 s45, s45, 2")
    a("s_lshl_b32 s45, s45, 9")
    a("s_add_u32 s35, s35, s45")
    a(f"s_add_u32 s35, s35, {WS_S}")
    base_add(52, 28, "s35")
    a("v_and_b32 v100, 7, v0")
    a("v_lshlrev_b32 v101, 4, v100")
    a("v_lshlrev_b32 v100, 11, v100")
    a("v_lshrrev_b32 v102, 3, v0")
    a("v_lshl_add_u32 v100, v102, 5, v100")
    a("v_lshlrev_b32 v102, 4, v102")
    a("v_min_u32 v103, 23, v0")
    a("v_lshlrev_b32 v103, 2, v103")
def o_gather(lt):
    b = 40
    stamp(6)
    def issue():
        for i in range(3):
            a(f"global_load_dwordx4 v[{b+24+4*i}:{b+27+4*i}], v101, s[52:53] offset:{128*i} sc1")
        for i, sb in enumerate((60, 46, 48)):
            a(f"global_load_dwordx4 v[{b+8*i}:{b+8*i+3}], v100, s[{sb}:{sb+1}] sc1")
            a(f"global_load_dwordx4 v[{b+8*i+4}:{b+8*i+7}], v100, s[{sb}:{sb+1}] offset:16 sc1")
    def check():
        for k in range(8):
            a(f"v_max3_u32 v{88+k}, v{b+3*k}, v{b+3*k+1}, v{b+3*k+2}")
        for i in range(6):
            a(f"v_xor_b32 v{80+i}, s34, v{b+25+2*i}")
        a("v_max3_u32 v88, v88, v89, v90")
        a("v_max3_u32 v91, v91, v92, v93")
        a("v_or3_b32 v80, v80, v81, v82")
        a("v_or3_b32 v83, v83, v84, v85")
        a("v_max3_u32 v88, v88, v94, v95")
        a("v_or_b32 v80, v80, v83")
        a("v_max_u32 v88, v88, v91")
        a("v_cmp_ne_u32 s[54:55], 0, v80")
        a("v_cmp_eq_u32 vcc, -1, v88")
        a("s_or_b64 vcc, vcc, s[54:55]")
    pollm(issue, check)
    stamp(4)
    m = [b + 24, b + 28, b + 32]; l = [b + 26, b + 30, b + 34]
    a(f"v_max3_f32 v80, v{m[0]}, v{m[1]}, v{m[2]}")
    for pat in ["quad_perm:[1,0,3,2]", "quad_perm:[2,3,0,1]", "row_half_mirror"]:
        a(f"v_max_f32_dpp v80, v80, v80 {pat} row_mask:0xf bank_mask:0xf")
    for i in range(3): a(f"v_sub_f32 v{81+i}, v{m[i]}, v80")
    for i in range(3): a(f"v_mul_f32 v{81+i}, {hex(f2u(CEXP))}, v{81+i}")
    for i in range(3): a(f"v_exp_f32 v{81+i}, v{81+i}")
    a(f"v_mul_f32 v85, v81, v{l[0]}")
    for k in range(8): a(f"v_mul_f32 v{86+k}, v81, v{b+k}")
    a(f"v_fmac_f32 v85, v82, v{l[1]}")
    for k in range(8): a(f"v_fmac_f32 v{86+k}, v82, v{b+8+k}")
    a(f"v_fmac_f32 v85, v83, v{l[2]}")
    for k in range(8): a(f"v_fmac_f32 v{86+k}, v83, v{b+16+k}")
    for pat in ["quad_perm:[1,0,3,2]", "quad_perm:[2,3,0,1]", "row_half_mirror"]:
        for r in range(85, 94):
            a(f"v_add_f32_dpp v{r}, v{r}, v{r} {pat} row_mask:0xf bank_mask:0xf")
    a("v_rcp_f32 v85, v85")
    for k in range(8): a(f"v_mul_f32 v{86+k}, v{86+k}, v85")
    for k in range(4): a(f"v_cvt_pk_bf16_f32 v{96+k}, v{86+2*k}, v{87+2*k}")
    a(f"ds_write_b128 v102, v[96:99] offset:{OPAIR}")
    barrier()
def sum7(stride):
    for w in range(7):
        a(f"ds_read_b64 v[{20+2*w}:{21+2*w}], v13 offset:{PART+stride*w}")
    a("s_waitcnt lgkmcnt(0)")
    for k in range(2):
        a(f"v_add_f32 v{20+k}, v{20+k}, v{22+k}")
        a(f"v_add_f32 v{24+k}, v{24+k}, v{26+k}")
        a(f"v_add_f32 v{28+k}, v{28+k}, v{30+k}")
    for k in range(2):
        a(f"v_add_f32 v{20+k}, v{20+k}, v{24+k}")
        a(f"v_add_f32 v{28+k}, v{28+k}, v{32+k}")
    for k in range(2):
        a(f"v_add_f32 v{20+k}, v{20+k}, v{28+k}")

a("s_cmp_lt_u32 s31, 16")
a("s_cbranch_scc1 L_svX")
a("s_branch L_svY")

a("L_svX:")
final_pre()
a("global_load_ushort v104, v20, s[4:5]")
a("global_load_ushort v105, v20, s[22:23]")
a("v_mov_b32 v106, v20")
a("s_mov_b64 s[6:7], s[24:25]")
if XD:
    a("s_waitcnt vmcnt(0)")
    a("s_barrier")
a("s_barrier")
stamp(1)
sq_issue()
sq_finish()
a("s_waitcnt vmcnt(0)")
flags_store(True, False)
barrier()
barrier()
combine(7)
stats_publish()
stamp(5)
final_gather()
a("v_and_b32 v26, 31, v0")
a("v_lshlrev_b32 v26, 2, v26")
for k in range(8):
    a(f"ds_read_b32 v{80+k}, v26 offset:{FIN+128*k}")
a("v_lshlrev_b32 v104, 16, v104")
a("v_lshlrev_b32 v105, 16, v105")
a("v_add_f32 v104, v104, v105")
a("s_waitcnt lgkmcnt(0)")
for k in range(4): a(f"v_add_f32 v{80+2*k}, v{80+2*k}, v{81+2*k}")
a("v_add_f32 v80, v80, v82")
a("v_add_f32 v84, v84, v86")
a("v_add_f32 v80, v80, v84")
a("v_add_f32 v80, v80, v104")
a("v_cvt_pk_bf16_f32 v80, v80, v80")
a("s_mov_b32 exec_hi, 0")
a("global_store_short v106, v80, s[6:7]")
a("s_mov_b64 exec, -1")
a("s_cmp_eq_u32 s2, 0")
a("s_cbranch_scc0 L_fin")
a("v_mov_b32 v14, s34")
a("v_mov_b32 v13, 0")
a("s_mov_b64 exec, 1")
a("global_store_dword v13, v14, s[28:29] sc1")
a("s_mov_b64 exec, -1")
a("s_branch L_fin")

a("L_svY:")
a("s_mul_i32 s46, s30, 7")
a("s_max_u32 s47, s31, 24")
a("s_min_u32 s47, s47, 30")
a("s_add_u32 s46, s46, s47")
a("s_sub_u32 s46, s46, 24")
a("s_lshl_b32 s35, s46, 6")
a("v_and_b32 v13, 15, v0")
a("v_lshlrev_b32 v13, 2, v13")
a("v_add_u32 v13, s35, v13")
a("global_load_dword v44, v13, s[18:19]")
a("s_cmp_lt_u32 s31, 24")
a("s_cbranch_scc1 L_svY_a")
a("s_waitcnt vmcnt(3)")
a("s_branch L_svY_b")
a("L_svY_a:")
a("s_waitcnt vmcnt(5)")
a("L_svY_b:")
layernorm(8, 20, 28)
a("s_mov_b32 exec_hi, 0x00ffffff")
a(f"ds_write_b128 v2, v[8:11] offset:{XB}")
a("s_mov_b32 exec_hi, -1")
stamp(1)
barrier()
a("v_and_b32 v13, 31, v0")
a("v_lshlrev_b32 v45, 4, v13")
a("v_lshlrev_b32 v13, 3, v13")
a("s_sub_u32 s35, s31, 16")
a("s_and_b32 s47, s35, 7")
a("s_lshl_b32 s35, s47, 9")
a("s_lshl_b32 s45, s30, 12")
a("s_add_u32 s35, s35, s45")
a(f"s_add_u32 s35, s35, {WS_P}")
base_add(54, 28, "s35")
a("s_cmp_lt_u32 s31, 24")
a("s_cbranch_scc1 L_sv_recv")
layernorm(8, 20, 28)
a("s_mov_b32 exec_hi, 0x00ffffff")
a(f"ds_write_b128 v2, v[8:11] offset:{YB}")
a("s_mov_b32 exec_hi, -1")
a("s_waitcnt vmcnt(0)")
barrier()
sum7(256)
a("v_mov_b32 v22, v21")
a("v_mov_b32 v21, s34")
a("v_mov_b32 v23, s34")
a("s_mov_b32 exec_hi, 0")
a("global_store_dwordx4 v45, v[20:23], s[54:55] sc1")
a("s_mov_b32 exec_hi, -1")
flags_store(False, True)
stamp(2)
a("s_cmp_eq_u32 s31, 31")
a("s_cbranch_scc1 L_fin")
barrier()
a("s_barrier")
a("v_and_b32 v13, 15, v0")
a("v_lshlrev_b32 v14, 2, v13")
a("v_lshlrev_b32 v13, 3, v13")
barrier()
sum7(128)
a("v_cvt_pk_bf16_f32 v18, v20, v21")
a("v_lshlrev_b32 v16, 16, v18")
a("v_and_b32 v17, 0xffff0000, v18")
a("v_lshlrev_b32 v18, 16, v44")
a("v_and_b32 v19, 0xffff0000, v44")
a("v_add_f32 v16, v16, v18")
a("v_add_f32 v17, v17, v19")
a("v_cvt_pk_bf16_f32 v18, v16, v17")
a("v_lshlrev_b32 v16, 16, v18")
a("v_and_b32 v17, 0xffff0000, v18")
K0 = math.sqrt(2.0 / math.pi); K1 = 0.044715
c1 = -2.0 * K0 * math.log2(math.e); c3 = c1 * K1
a(f"v_mov_b32 v22, {hex(f2u(c1))}")
for k in range(2): a(f"v_mul_f32 v{18+k}, v{16+k}, v{16+k}")
for k in range(2): a(f"v_fmamk_f32 v{18+k}, v{18+k}, {hex(f2u(c3))}, v22")
for k in range(2): a(f"v_mul_f32 v{18+k}, v{18+k}, v{16+k}")
for k in range(2): a(f"v_exp_f32 v{18+k}, v{18+k}")
for k in range(2): a(f"v_add_f32 v{18+k}, 1.0, v{18+k}")
for k in range(2): a(f"v_rcp_f32 v{18+k}, v{18+k}")
for k in range(2): a(f"v_mul_f32 v{16+k}, v{16+k}, v{18+k}")
a("v_cvt_pk_bf16_f32 v16, v16, v17")
a(f"ds_write_b32 v14, v16 offset:{HB}")
stamp(3)
barrier()
a("s_branch L_fin")
a("L_sv_recv:")
a("v_and_b32 v14, 15, v0")
a("v_mul_u32_u24 v12, 12, v14")
a("v_lshlrev_b32 v15, 4, v14")
a("v_lshrrev_b32 v14, 4, v0")
a("v_lshl_add_u32 v15, v14, 11, v15")
a("s_mul_i32 s35, s47, 192")
a("s_lshl_b32 s45, s30, 16")
a("s_add_u32 s35, s35, s45")
a(f"s_add_u32 s35, s35, {WS_Q}")
base_add(36, 28, "s35")
a("v_mov_b32 v43, s34")
o_gather_pre()
a("s_waitcnt vmcnt(0)")
barrier()
a("global_load_dwordx4 v[48:51], v45, s[54:55] sc1")
sum7(256)
lp = a.newlabel("L_px"); dn = a.newlabel("L_pxd")
a.label(lp)
a("s_waitcnt vmcnt(0)")
a("v_xor_b32 v34, s34, v49")
a("v_xor_b32 v35, s34, v51")
a("v_or_b32 v34, v34, v35")
a("v_cmp_ne_u32 vcc, 0, v34")
a(f"s_cbranch_vccz {dn}")
a("global_load_dwordx4 v[48:51], v45, s[54:55] sc1")
guard(lp)
a("s_waitcnt vmcnt(0)")
a.label(dn)
a("v_add_f32 v20, v20, v48")
a("v_add_f32 v21, v21, v50")
a("v_cvt_pk_bf16_f32 v30, v20, v21")
for k in range(3):
    a(f"ds_bpermute_b32 v{40+k}, v12, v30 offset:{4*k}")
a("s_mov_b32 exec_lo, 0x07ff07ff")
a("s_mov_b32 exec_hi, 0x07ff07ff")
a("s_waitcnt lgkmcnt(0)")
for k in range(6):
    a("global_store_dwordx4 v15, v[40:43], s[36:37] sc1")
    if k < 5: base_add(36, 36, 8192)
a("s_mov_b64 exec, -1")
flags_store(True, True)
a("s_barrier")
stamp(2)
sq_issue()
sq_finish()
barrier()
light(lambda: a("global_load_dword v81, v103, s[40:41] sc1"), lambda: a("v_cmp_ne_u32 vcc, s34, v81"), done_if_nz=False, slp=0)
barrier()
combine(2)
stats_publish()
o_gather(True)

a("L_fin:")
if PROFILE:
    stamp(7)
    a("s_waitcnt lgkmcnt(0) vmcnt(0)")
    for k in range(8):
        a(f"v_mov_b32 v{16+k}, s{STM[k]}")
    a("s_lshl_b32 s35, s2, 3")
    a("s_add_u32 s35, s35, s3")
    a("s_lshl_b32 s35, s35, 6")
    a(f"s_add_u32 s35, s35, {WS_PROF}")
    base_add(60, 28, "s35")
    a("v_mov_b32 v13, 0")
    a("s_mov_b64 exec, 1")
    a("global_store_dwordx4 v13, v[16:19], s[60:61]")
    a("global_store_dwordx4 v13, v[20:23], s[60:61] offset:16")
a("L_end:")

open(OUT, "w").write(wrap(a.text(), 256, 512, LDS_BYTES, vgpr=128, sgpr=102))
print("wrote", OUT, len(a.lines), "lines")
```

```python
import sys, math, struct
sys.path.insert(0, "gen"); sys.path.insert(0, "exp")
from asmlib import Asm
from gen_common import wrap

PROFILE = "--prof" in sys.argv
def opt(name, default):
    for x in sys.argv:
        if x.startswith(f"--{name}="): return int(x.split("=")[1])
    return default
SLP = opt("slp", 2)
PSLP = opt("pslp", 0)
QSLP = opt("qslp", 1)
VA = opt("va", 4)
XD = opt("xd", 0)
MD = opt("md", 0)
KW = opt("kw", 8)
MW = opt("mw", 0)
OUT = [x for x in sys.argv[1:] if not x.startswith("--")][0]

WS_R2  = 0x1000
WS_R1  = 0x2000
WS_P   = 0x3000
WS_S   = 0x20000
WS_O   = 0x80000
WS_F   = 0x100000
WS_Q   = 0x200000
WS_PROF = 0x8000000
QHS = 640
ZR = 0x500
SMAX = 0x700; LSUM = 0x740
OPAIR = 0x780
XB = 0x800
YB = 0xB80
HB = 0xF00
PART = 0xF80
FIN = 0xF80
OB = 0x1800
LDS_BYTES = 0x5800

CEXP = 0.0625 * math.log2(math.e)
def f2u(f): return struct.unpack("<I", struct.pack("<f", f))[0]

a = Asm()
STM = [96, 98, 100, 26, 60, 62, 50, 24]
def stamp(k):
    if PROFILE and k != 4:
        r = STM[k]
        a(f"s_memrealtime s[{r}:{r+1}]")
def base_add(dst, src, offs):
    a(f"s_add_u32 s{dst}, s{src}, {offs}")
    a(f"s_addc_u32 s{dst+1}, s{src+1}, 0")
def barrier():
    a("s_waitcnt lgkmcnt(0)")
    a("s_barrier")
def guard(lp):
    a("s_add_u32 s44, s44, 1")
    a("s_cmp_gt_u32 s44, 0x40000")
    a(f"s_cbranch_scc0 {lp}")
def pollm(issue, check):
    lp = a.newlabel("L_pl"); dn = a.newlabel("L_pd")
    a.label(lp)
    issue()
    a(f"s_waitcnt vmcnt(0)")
    check()
    a(f"s_cbranch_vccz {dn}")
    a("s_mov_b64 exec, vcc")
    if PSLP: a(f"s_sleep {PSLP}")
    guard(lp)
    a.label(dn)
    a("s_mov_b64 exec, -1")
def light(load, check, done_if_nz=True, slp=None):
    lp = a.newlabel("L_lt"); dn = a.newlabel("L_ld")
    slp = SLP if slp is None else slp
    a.label(lp)
    load()
    a("s_waitcnt vmcnt(0)")
    check()
    a(f"s_cbranch_vccnz {dn}" if done_if_nz else f"s_cbranch_vccz {dn}")
    if slp: a(f"s_sleep {slp}")
    guard(lp)
    a.label(dn)
def preperm(src_a, src_b, dst, n=4):
    for k in range(n):
        a(f"v_perm_b32 v{dst+2*k}, v{src_b+k}, v{src_a+k}, s32")
        a(f"v_perm_b32 v{dst+2*k+1}, v{src_b+k}, v{src_a+k}, s33")
def dots(acc, pp, coef, n=8, first=False):
    for k in range(n):
        c = "0" if first else f"v{acc+k}"
        a(f"v_dot2_f32_bf16 v{acc+k}, v{pp+k}, {coef}, {c}")
def reduce_hi(acc, extra_ror):
    for k in range(4): a(f"v_permlane32_swap_b32 v{acc+k}, v{acc+k+4}")
    for k in range(4): a(f"v_add_f32 v{acc+k}, v{acc+k}, v{acc+k+4}")
    for k in range(2): a(f"v_permlane16_swap_b32 v{acc+k}, v{acc+k+2}")
    for k in range(2): a(f"v_add_f32 v{acc+k}, v{acc+k}, v{acc+k+2}")
    for r in extra_ror:
        for k in range(2):
            a(f"v_add_f32_dpp v{acc+k}, v{acc+k}, v{acc+k} row_ror:{r} row_mask:0xf bank_mask:0xf")
def red1(op, d, src, full=False):
    for pat in ["quad_perm:[1,0,3,2]", "quad_perm:[2,3,0,1]", "row_half_mirror", "row_mirror"]:
        a(f"{op}_dpp v{d}, v{src}, v{src} {pat} row_mask:0xf bank_mask:0xf")
        src = d
    a(f"{op}_dpp v{d}, v{d}, v{d} row_bcast:15 row_mask:0xa bank_mask:0xf")
    if full: a(f"{op}_dpp v{d}, v{d}, v{d} row_bcast:31 row_mask:0xc bank_mask:0xf")
def wave_sum_to_sgpr(v, sdst):
    red1("v_add_f32", v, v, full=True)
    a(f"v_readlane_b32 s{sdst}, v{v}, 63")

def layernorm(pk, f, t):
    for k in range(4):
        a(f"v_lshlrev_b32 v{f+2*k}, 16, v{pk+k}")
        a(f"v_and_b32 v{f+2*k+1}, 0xffff0000, v{pk+k}")
    a(f"v_add_f32 v{t}, v{f}, v{f+1}")
    a(f"v_add_f32 v{t+1}, v{f+2}, v{f+3}")
    a(f"v_add_f32 v{t+2}, v{f+4}, v{f+5}")
    a(f"v_add_f32 v{t+3}, v{f+6}, v{f+7}")
    a(f"v_add_f32 v{t}, v{t}, v{t+1}")
    a(f"v_add_f32 v{t+2}, v{t+2}, v{t+3}")
    a(f"v_add_f32 v{t}, v{t}, v{t+2}")
    wave_sum_to_sgpr(t, 35)
    a(f"v_mov_b32 v{t+1}, {hex(f2u(1.0/448))}")
    a(f"v_mul_f32 v{t+2}, s35, v{t+1}")
    a(f"v_mov_b32 v{t}, 0")
    a(f"v_mov_b32 v{t+5}, 0")
    a("s_mov_b32 exec_hi, 0x00ffffff")
    for k in range(0, 8, 2):
        a(f"v_sub_f32 v{t+3}, v{f+k}, v{t+2}")
        a(f"v_sub_f32 v{t+4}, v{f+k+1}, v{t+2}")
        a(f"v_fmac_f32 v{t}, v{t+3}, v{t+3}")
        a(f"v_fmac_f32 v{t+5}, v{t+4}, v{t+4}")
    a("s_mov_b32 exec_hi, -1")
    a(f"v_add_f32 v{t}, v{t}, v{t+5}")
    wave_sum_to_sgpr(t, 35)
    a(f"v_mul_f32 v{t+3}, s35, v{t+1}")
    a(f"v_cvt_pk_bf16_f32 v{t+4}, v{t+2}, v{t+3}")
    a(f"v_lshlrev_b32 v{t+2}, 16, v{t+4}")
    a(f"v_and_b32 v{t+3}, 0xffff0000, v{t+4}")
    a(f"v_add_f32 v{t+3}, {hex(f2u(1e-5))}, v{t+3}")
    a(f"v_cvt_pk_bf16_f32 v{t+3}, v{t+3}, v{t+3}")
    a(f"v_lshlrev_b32 v{t+3}, 16, v{t+3}")
    a(f"v_sqrt_f32 v{t+3}, v{t+3}")
    for k in range(8):
        a(f"v_sub_f32 v{f+k}, v{f+k}, v{t+2}")
    a(f"v_cvt_pk_bf16_f32 v{t+3}, v{t+3}, v{t+3}")
    a(f"v_lshlrev_b32 v{t+3}, 16, v{t+3}")
    a(f"v_rcp_f32 v{t+4}, v{t+3}")
    for k in range(4):
        a(f"v_cvt_pk_bf16_f32 v{pk+k}, v{f+2*k}, v{f+2*k+1}")
    for k in range(4):
        a(f"v_lshlrev_b32 v{f+2*k}, 16, v{pk+k}")
        a(f"v_and_b32 v{f+2*k+1}, 0xffff0000, v{pk+k}")
    for k in range(8):
        a(f"v_mul_f32 v{t}, v{f+k}, v{t+4}")
        a(f"v_fma_f32 v{t+1}, -v{t}, v{t+3}, v{f+k}")
        a(f"v_fma_f32 v{f+k}, v{t+1}, v{t+4}, v{t}")
    for k in range(4):
        a(f"v_cvt_pk_bf16_f32 v{pk+k}, v{f+2*k}, v{f+2*k+1}")
    a("s_mov_b32 exec_lo, 0")
    a("s_mov_b32 exec_hi, 0xff000000")
    for k in range(4): a(f"v_mov_b32 v{pk+k}, 0")
    a("s_mov_b64 exec, -1")

def load_tag(): a("s_load_dword s34, s[28:29], 0")
def make_tag():
    a("s_mul_i32 s34, s34, 1664525")
    a("s_add_u32 s34, s34, 1013904223")

stamp(0)
a("s_cmp_ge_u32 s2, 256")
a("s_cbranch_scc1 L_end")
a("s_load_dwordx16 s[4:19], s[0:1], 0")
a("s_load_dwordx8 s[20:27], s[0:1], 64")
a("s_load_dwordx2 s[28:29], s[0:1], 96")
a("v_lshrrev_b32 v1, 6, v0")
a("v_and_b32 v0, 63, v0")
a("v_readfirstlane_b32 s3, v1")
a("s_and_b32 s30, s2, 7")
a("s_lshr_b32 s31, s2, 3")
a("s_add_u32 s3, s3, 7")
a("s_and_b32 s3, s3, 7")
a("s_mov_b32 s32, 0x05040100")
a("s_mov_b32 s33, 0x07060302")
a("s_mov_b32 s44, 0")
if PROFILE:
    for r in (98, 100, 62, 50): a(f"s_mov_b32 s{r}, 0")
a("s_cmp_eq_u32 s3, 7")
a("s_cbranch_scc1 L_service")
a("s_cmp_lt_u32 s31, 16")
a("s_cbranch_scc1 L_X")
a("s_cmp_lt_u32 s31, 24")
a("s_cbranch_scc1 L_Yq")
a("s_cmp_lt_u32 s31, 31")
a("s_cbranch_scc1 L_Ym")
a("s_branch L_Ys")

def prof_zero():
    if PROFILE:
        a("s_mov_b32 s26, 0")

def tile_off():
    a("s_lshl_b32 s35, s35, 13")
    a("s_lshl_b32 s45, s30, 22")
    a("s_add_u32 s35, s35, s45")
    a("s_add_u32 s35, s35, 0x300000")
def tile_bases():
    base_add(36, 6, "s35")
    base_add(38, 36, 4096)
    base_add(40, 8, "s35")
    base_add(42, 40, 4096)
def k_voff():
    a("v_and_b32 v2, 7, v0")
    a("v_lshlrev_b32 v2, 9, v2")
    a("v_lshrrev_b32 v3, 3, v0")
    a("v_lshl_add_u32 v2, v3, 4, v2")
    a("v_lshlrev_b32 v3, 4, v0")
def k_loads():
    for oct in range(2):
        for ls in range(4):
            r = 32 + (oct * 4 + ls) * 4
            a(f"global_load_dwordx4 v[{r}:{r+3}], v2, s[{36+2*oct}:{37+2*oct}] offset:{ls*128} nt")
def v_loads(k0, k1):
    for k in range(k0, k1):
        b = 40 if k < 4 else 42
        a(f"global_load_dwordx4 v[{64+4*k}:{67+4*k}], v3, s[{b}:{b+1}] offset:{(k%4)*1024} nt")
def tile_pre():
    a("v_and_b32 v6, 1, v0")
    a(f"v_mul_u32_u24 v6, {QHS}, v6")
    a("v_lshrrev_b32 v7, 4, v0")
    a("v_lshlrev_b32 v7, 5, v7")
    a("v_bfe_u32 v8, v0, 1, 1")
    a("v_lshl_add_u32 v7, v8, 4, v7")
    a(f"v_add_u32 v6, v6, v7")
    a(f"v_add_u32 v7, {ZR}, v7")
    a("v_bfe_u32 v8, v0, 2, 2")
    a("v_cmp_eq_u32 vcc, 0, v8")
    a("v_cndmask_b32 v4, v7, v6, vcc")
    a("v_cmp_eq_u32 vcc, 1, v8")
    a("v_cndmask_b32 v5, v7, v6, vcc")
    a("v_mov_b32 v15, 0xff800000")
    a("s_mov_b32 s46, 0x00ff00ff")
    a("s_mov_b32 s47, 0x00ff00ff")
    a("v_lshrrev_b32 v31, 5, v0")
    a("v_lshlrev_b32 v29, 5, v31")
    a("s_lshl_b32 s35, s3, 2")
    a("v_add_u32 v28, s35, v29")
    a("v_lshlrev_b32 v31, 2, v31")
    a("s_lshl_b32 s35, s3, 11")
    a("v_lshl_add_u32 v30, v0, 5, s35")
def gather_pre():
    a("s_lshl_b32 s35, s31, 11")
    a("s_lshl_b32 s45, s30, 16")
    a("s_add_u32 s35, s35, s45")
    a(f"s_add_u32 s45, s35, {WS_O}")
    base_add(56, 28, "s45")
    a(f"s_add_u32 s35, s35, {WS_Q}")
    a("s_mul_i32 s45, s3, 192")
    a("s_add_u32 s35, s35, s45")
    base_add(58, 28, "s35")
    a("s_lshr_b32 s35, s3, 2")
    a(f"s_mul_i32 s35, s35, {QHS}")
    a("s_and_b32 s45, s3, 3")
    a("s_lshl_b32 s45, s45, 7")
    a("s_add_u32 s35, s35, s45")
    a("v_lshl_add_u32 v19, v0, 2, s35")
    a("s_lshl_b32 s35, s3, 8")
    a("v_lshl_add_u32 v17, v0, 2, s35")
WIN = [8, 64, 80]
def sq_issue():
    for k in range(3):
        a(f"s_load_dwordx16 s[{WIN[k]}:{WIN[k]+15}], s[58:59], {64*k} glc")
def sq_finish():
    lp = a.newlabel("L_sq"); rt = a.newlabel("L_sqr"); dn = a.newlabel("L_sqd")
    a.label(lp)
    a("s_waitcnt lgkmcnt(0)")
    for gi in range(11):
        r = WIN[gi // 4] + 4 * (gi % 4) + 3
        a(f"s_cmp_lg_u32 s{r}, s34")
        a(f"s_cbranch_scc1 {rt}")
    a(f"s_branch {dn}")
    a.label(rt)
    if QSLP: a(f"s_sleep {QSLP}")
    sq_issue()
    guard(lp)
    a("s_waitcnt lgkmcnt(0)")
    a.label(dn)
    for i in range(32):
        gi, k = divmod(i, 3)
        r = WIN[gi // 4] + 4 * (gi % 4) + k
        a(f"v_writelane_b32 v8, s{r}, {i}")
    a("s_mov_b32 exec_hi, 0")
    a("ds_write_b32 v19, v8")
    a("s_mov_b32 exec_hi, -1")
    barrier()
def tile_main(mid=None, extra=0, ptmp=(112, 120), stmp=112):
    for oct in range(2):
        for ls in range(4):
            r = 96 + (oct * 4 + ls) * 4
            a(f"ds_read_b128 v[{r}:{r+3}], v{4+oct} offset:{ls*128}")
    a(f"s_waitcnt vmcnt(8) lgkmcnt(0)")
    stamp(2)
    first = True
    for oct in range(2):
        for ls in range(4):
            ra = 96 + (oct * 4 + ls) * 4; rb = 32 + (oct * 4 + ls) * 4
            a(f"v_mfma_f32_16x16x32_bf16 v[8:11], v[{ra}:{ra+3}], v[{rb}:{rb+3}], {'0' if first else 'v[8:11]'}")
            first = False
    if mid: mid()
    a("v_add_f32_dpp v12, v10, v8 row_ror:8 row_mask:0xf bank_mask:0xf")
    a("v_add_f32_dpp v13, v11, v9 row_ror:8 row_mask:0xf bank_mask:0xf")
    a("v_permlane32_swap_b32 v12, v13")
    a("v_cvt_pk_bf16_f32 v12, v12, v12")
    a("v_lshlrev_b32 v12, 16, v12")
    a("v_cndmask_b32 v12, v15, v12, s[46:47]")
    red1("v_max_f32", 16, 12)
    a("s_mov_b32 exec_lo, 0x10000")
    a("s_mov_b32 exec_hi, 0x10000")
    a(f"ds_write_b32 v28, v16 offset:{SMAX}")
    a("s_mov_b64 exec, -1")
    barrier()
    z = stmp
    a(f"ds_read_b128 v[{z}:{z+3}], v29 offset:{SMAX}")
    a(f"ds_read_b128 v[{z+4}:{z+7}], v29 offset:{SMAX+16}")
    a("s_waitcnt lgkmcnt(0)")
    a(f"v_max3_f32 v{z}, v{z}, v{z+1}, v{z+2}")
    a(f"v_max3_f32 v{z+3}, v{z+3}, v{z+4}, v{z+5}")
    a(f"v_max3_f32 v{z}, v{z}, v{z+6}, v{z+7}")
    a(f"v_max_f32 v{z}, v{z}, v{z+3}")
    a(f"v_sub_f32 v12, v12, v{z}")
    a(f"v_mul_f32 v12, {hex(f2u(CEXP))}, v12")
    a("v_exp_f32 v12, v12")
    a("v_mov_b32_dpp v14, v12 quad_perm:[2,3,0,1] row_mask:0xf bank_mask:0xf")
    a("v_cvt_pk_bf16_f32 v14, v12, v14")
    for m, L in enumerate((0, 4, 16, 20)):
        a(f"ds_bpermute_b32 v{48+m}, v31, v14 offset:{4*L}")
        a(f"ds_bpermute_b32 v{52+m}, v31, v14 offset:{4*(L+32)}")
    red1("v_add_f32", 16, 12)
    a("s_mov_b32 exec_lo, 0x10000")
    a("s_mov_b32 exec_hi, 0x10000")
    a(f"ds_write_b32 v28, v16 offset:{LSUM}")
    a("s_mov_b64 exec, -1")
    a("s_waitcnt lgkmcnt(0)")
    stamp(3)
    for m in range(4):
        a(f"s_waitcnt vmcnt({6-2*m+extra})")
        ra = 64 + 8 * m; rb = ra + 4
        t = ptmp[m & 1]
        preperm(ra, rb, t, n=4)
        dots(32, t, f"v{48+m}", n=8, first=(m == 0))
        dots(40, t, f"v{52+m}", n=8, first=(m == 0))
    stamp(4)
    for k in range(8): a(f"v_permlane32_swap_b32 v{32+k}, v{40+k}")
    for k in range(8): a(f"v_add_f32 v{32+k}, v{32+k}, v{40+k}")
    a(f"ds_write_b128 v30, v[32:35] offset:{OB}")
    a(f"ds_write_b128 v30, v[36:39] offset:{OB+16}")
def combine(nt):
    s0 = 0
    o0 = OB // 256
    n2 = (nt + 1) // 2
    for k in range(n2):
        if 2 * k + 1 < nt:
            a(f"ds_read2st64_b32 v[{8+2*k}:{9+2*k}], v17 offset0:{o0+16*k+8*s0} offset1:{o0+16*k+8+8*s0}")
        else:
            a(f"ds_read_b32 v{8+2*k}, v17 offset:{OB+2048*2*k}")
    a("s_waitcnt lgkmcnt(0)")
    vals = list(range(8, 8 + nt))
    while len(vals) > 1:
        nxt = []
        for k in range(0, len(vals) - 1, 2):
            a(f"v_add_f32 v{vals[k]}, v{vals[k]}, v{vals[k+1]}")
            nxt.append(vals[k])
        if len(vals) % 2: nxt.append(vals[-1])
        vals = nxt
    a("v_min_u32 v8, -2, v8")
    a("global_store_dword v17, v8, s[56:57] sc1")

def final_pre():
    a("s_min_u32 s35, s31, 1")
    a("s_lshl_b32 s45, s30, 1")
    a("s_add_u32 s45, s45, s35")
    a("s_min_u32 s45, s45, 13")
    a("v_and_b32 v20, 31, v0")
    a("s_lshl_b32 s35, s45, 5")
    a("v_add_u32 v20, s35, v20")
    a("v_lshlrev_b32 v20, 1, v20")
    a("s_lshl_b32 s35, s45, 14")
    a("s_lshl_b32 s45, s3, 11")
    a("s_add_u32 s35, s35, s45")
    a(f"s_add_u32 s35, s35, {WS_F}")
    base_add(52, 28, "s35")
    a("s_lshl_b32 s35, s3, 6")
    a(f"s_add_u32 s35, s35, {WS_R2}")
    base_add(48, 28, "s35")
def final_gather():
    a("s_cmp_lt_u32 s31, 2")
    a(f"s_cbranch_scc0 L_fin")
    a("s_cmp_lt_u32 s30, 7")
    a(f"s_cbranch_scc0 L_fin")
    a("v_lshlrev_b32 v3, 4, v0")
    a("v_and_b32 v24, 15, v0")
    a("v_lshlrev_b32 v24, 2, v24")
    a("v_and_b32 v25, 7, v0")
    a("v_lshlrev_b32 v25, 4, v25")
    a("v_lshrrev_b32 v26, 4, v0")
    a("v_lshl_add_u32 v25, v26, 2, v25")
    a("s_lshl_b32 s35, s3, 7")
    a("v_add_u32 v25, s35, v25")
    light(lambda: a(f"global_load_dword v48, v24, s[48:49] sc1"), lambda: a(f"v_cmp_ne_u32 vcc, s34, v48"), done_if_nz=False, slp=0)
    def f_issue2():
        a(f"global_load_dwordx4 v[40:43], v3, s[52:53] sc1")
        a(f"global_load_dwordx4 v[44:47], v3, s[52:53] offset:1024 sc1")
    def f_check2():
        a(f"v_max3_u32 v50, v40, v41, v42")
        a(f"v_max3_u32 v51, v43, v44, v45")
        a(f"v_max3_u32 v50, v50, v46, v47")
        a("v_max_u32 v50, v50, v51")
        a("v_cmp_eq_u32 vcc, -1, v50")
    pollm(f_issue2, f_check2)
    for k in range(4): a(f"v_add_f32 v{40+k}, v{40+k}, v{44+k}")
    a("v_permlane32_swap_b32 v40, v42")
    a("v_permlane32_swap_b32 v41, v43")
    a("v_add_f32 v40, v40, v42")
    a("v_add_f32 v41, v41, v43")
    a("v_permlane16_swap_b32 v40, v41")
    a("v_add_f32 v40, v40, v41")
    a(f"v_add_f32_dpp v40, v40, v40 row_ror:8 row_mask:0xf bank_mask:0xf")
    a(f"ds_write_b32 v25, v40 offset:{FIN}")
    barrier()

a("L_X:")
a("s_mul_i32 s35, s31, 7")
a("s_add_u32 s35, s35, s3")
tile_off()
k_voff()
a("s_waitcnt lgkmcnt(0)")
tile_bases()
if not XD: k_loads()
load_tag()
prof_zero()
tile_pre()
gather_pre()
final_pre()
a("s_waitcnt lgkmcnt(0)")
make_tag()
if XD:
    a("s_barrier")
    k_loads()
a("s_barrier")
if KW < 8: a(f"s_waitcnt vmcnt({KW})")
v_loads(0, VA)
sq_issue()
v_loads(VA, 8)
stamp(1)
sq_finish()
tile_main()
barrier()
combine(7)
stamp(5)
final_gather()
a("s_branch L_fin")

def gemv_loads(ptr, row_sgpr, dst):
    a(f"s_mul_i32 s35, {row_sgpr}, 896")
    a("s_lshl_b32 s45, s3, 7")
    a("s_add_u32 s35, s35, s45")
    base_add(38, ptr, "s35")
    a("v_lshrrev_b32 v6, 3, v0")
    a("v_mul_u32_u24 v6, 3584, v6")
    a("v_and_b32 v7, 7, v0")
    a("v_lshl_add_u32 v6, v7, 4, v6")
    for i in range(4):
        a(f"global_load_dwordx4 v[{dst+4*i}:{dst+4*i+3}], v6, s[38:39] offset:{896*i} nt")
def publish_final_addr():
    a("s_lshl_b32 s35, s30, 4")
    a("s_add_u32 s35, s35, s31")
    a("s_sub_u32 s35, s35, 16")
    a("s_lshl_b32 s35, s35, 7")
    a("s_lshl_b32 s45, s3, 15")
    a("s_add_u32 s35, s35, s45")
    a(f"s_add_u32 s35, s35, {WS_F}")
    base_add(36, 28, "s35")
    a("v_bfe_u32 v6, v0, 2, 1")
    a("v_lshlrev_b32 v6, 14, v6")
    a("v_and_b32 v7, 3, v0")
    a("v_lshl_add_u32 v6, v7, 5, v6")
    a("v_lshrrev_b32 v7, 4, v0")
    a("v_lshl_add_u32 v6, v7, 3, v6")
def publish_final_store(acc):
    a(f"v_min_u32 v{acc}, -2, v{acc}")
    a(f"v_min_u32 v{acc+1}, -2, v{acc+1}")
    a("s_mov_b32 exec_lo, 0x00ff00ff")
    a("s_mov_b32 exec_hi, 0x00ff00ff")
    a(f"global_store_dwordx2 v6, v[{acc}:{acc+1}], s[36:37] sc1")
    a("s_mov_b64 exec, -1")
def wo_loads64(ptr, dst):
    a("s_lshl_b32 s48, s30, 9")
    a("s_sub_u32 s49, s31, 16")
    a("s_lshl_b32 s49, s49, 6")
    a("s_add_u32 s48, s48, s49")
    a(f"s_mul_i32 s35, s48, 896")
    a("s_lshl_b32 s45, s3, 7")
    a("s_add_u32 s35, s35, s45")
    base_add(38, ptr, "s35")
    base_add(60, 38, 3584)
    a("v_lshrrev_b32 v6, 3, v0")
    a("v_mul_u32_u24 v6, 7168, v6")
    a("v_and_b32 v7, 7, v0")
    a("v_lshl_add_u32 v6, v7, 4, v6")
    for i in range(8):
        b = 38 if i < 4 else 60
        a(f"global_load_dwordx4 v[{dst+4*i}:{dst+4*i+3}], v6, s[{b}:{b+1}] offset:{896*(i%4)} nt")

a("L_Yq:")
a("L_Ym:")
a("L_Ys:")
a("s_sub_u32 s46, s31, 16")
a("s_lshr_b32 s47, s46, 3")
a("s_mul_i32 s48, s47, 224")
a("s_lshl_b32 s45, s3, 5")
a("s_add_u32 s48, s48, s45")
a("s_lshl_b32 s35, s48, 13")
a("s_lshl_b32 s45, s30, 10")
a("s_add_u32 s35, s35, s45")
a("s_and_b32 s45, s46, 7")
a("s_lshl_b32 s45, s45, 7")
a("s_add_u32 s35, s35, s45")
a("v_lshrrev_b32 v6, 3, v0")
a("v_lshlrev_b32 v9, 3, v6")
a("v_lshlrev_b32 v6, 15, v6")
a("v_and_b32 v7, 7, v0")
a("v_lshl_add_u32 v6, v7, 4, v6")
a("s_waitcnt lgkmcnt(0)")
base_add(36, 10, "s35")
a("s_barrier")
for i in range(4):
    a(f"global_load_dwordx4 v[{96+4*i}:{99+4*i}], v6, s[36:37] nt")
    if i < 3: base_add(36, 36, 8192)
load_tag()
prof_zero()
a("s_lshl_b32 s35, s48, 1")
a("v_add_u32 v9, s35, v9")
a("v_and_b32 v7, 7, v0")
a("v_lshlrev_b32 v7, 5, v7")
a("v_lshrrev_b32 v8, 4, v0")
a("v_lshl_add_u32 v7, v8, 3, v7")
a("s_lshl_b32 s35, s3, 8")
a("v_add_u32 v7, s35, v7")
k_voff()
a("s_and_b32 s35, s46, 7")
a("s_lshl_b32 s35, s35, 1")
a("s_min_u32 s45, s3, 1")
a("s_add_u32 s35, s35, s45")
a("s_add_u32 s35, s35, 112")
tile_off()
tile_bases()
a("s_mov_b64 s[6:7], s[12:13]")
gather_pre()
a("s_waitcnt lgkmcnt(0)")
make_tag()
barrier()
a(f"ds_read_b64 v[28:29], v9 offset:{XB}")
for k in range(2):
    a(f"s_waitcnt vmcnt({2-2*k}) lgkmcnt(0)")
    t = 112 + 8 * k
    preperm(96 + 8 * k, 100 + 8 * k, t)
    dots(20, t, f"v{28+k}", first=(k == 0))
reduce_hi(20, [8])
a(f"ds_write_b64 v7, v[20:21] offset:{PART}")
stamp(1)
barrier()
a("s_cmp_lt_u32 s31, 24")
a("s_cbranch_scc0 L_Ym2")
a("s_cmp_lt_u32 s3, 2")
a("s_cbranch_scc0 L_Yq_notile")
tile_pre()
a("s_barrier")
k_loads()
v_loads(0, 8)
sq_issue()
sq_finish()
tile_main(lambda: wo_loads64(6, 96), 8, ptmp=(56, 56), stmp=56)
a("s_branch L_Yq_comb")
a("L_Yq_notile:")
a("s_barrier")
wo_loads64(6, 96)
sq_issue()
sq_finish()
barrier()
a("L_Yq_comb:")
barrier()
combine(2)
a("s_waitcnt vmcnt(0)")
for k in range(4):
    preperm(96 + 8 * k, 100 + 8 * k, 32 + 8 * k)
publish_final_addr()
a("v_lshrrev_b32 v8, 3, v0")
a("v_lshlrev_b32 v8, 4, v8")
stamp(5)
barrier()
a(f"ds_read_b128 v[12:15], v8 offset:{OPAIR}")
a("s_waitcnt lgkmcnt(0)")
for k in range(4):
    dots(20, 32 + 8 * k, f"v{12+k}", first=(k == 0))
reduce_hi(20, [8])
publish_final_store(20)
stamp(6)
a("s_branch L_fin")
a("L_Ym2:")
a("s_cmp_eq_u32 s31, 31")
a("s_cbranch_scc1 L_fin")
a("s_mul_i32 s46, s30, 7")
a("s_add_u32 s46, s46, s31")
a("s_sub_u32 s46, s46, 24")
a("s_mul_i32 s35, s3, 229376")
a("s_lshl_b32 s45, s46, 6")
a("s_add_u32 s35, s35, s45")
a("v_lshrrev_b32 v10, 2, v0")
a("v_mul_u32_u24 v10, 14336, v10")
a("v_and_b32 v7, 3, v0")
a("v_lshl_add_u32 v10, v7, 4, v10")
base_add(36, 16, "s35")
a("v_lshrrev_b32 v9, 2, v0")
a("v_lshlrev_b32 v9, 3, v9")
a("s_lshl_b32 s35, s3, 7")
a("v_add_u32 v9, s35, v9")
a("v_and_b32 v7, 3, v0")
a("v_lshlrev_b32 v7, 5, v7")
a("v_lshrrev_b32 v8, 4, v0")
a("v_lshl_add_u32 v7, v8, 3, v7")
a("v_add_u32 v12, s35, v7")
barrier()
for i in range(4):
    a(f"global_load_dwordx4 v[{64+4*i}:{67+4*i}], v10, s[36:37] offset:{3584*(i%2)} nt")
    if i == 1: base_add(36, 36, 7168)
a(f"ds_read_b64 v[28:29], v9 offset:{YB}")
a("s_barrier")
a("s_lshl_b32 s46, s46, 5")
gemv_loads(20, "s46", 32)
for k in range(2):
    a(f"s_waitcnt vmcnt({6-2*k}) lgkmcnt(0)")
    t = 96 + 8 * k
    preperm(64 + 8 * k, 68 + 8 * k, t)
    dots(20, t, f"v{28+k}", first=(k == 0))
reduce_hi(20, [8, 4])
a(f"ds_write_b64 v12, v[20:21] offset:{PART}")
a("v_lshrrev_b32 v8, 3, v0")
a("v_lshlrev_b32 v8, 3, v8")
barrier()
a("s_waitcnt vmcnt(0)")
preperm(32, 36, 112)
preperm(40, 44, 120)
publish_final_addr()
stamp(5)
barrier()
a(f"ds_read_b64 v[10:11], v8 offset:{HB}")
a("s_waitcnt lgkmcnt(0)")
dots(20, 112, "v10", first=True)
dots(20, 120, "v11")
reduce_hi(20, [8])
publish_final_store(20)
stamp(6)
a("s_branch L_fin")

a("L_service:")
a("v_lshlrev_b32 v2, 4, v0")
a("v_mov_b32 v3, 0")
for k in range(4): a(f"v_mov_b32 v{4+k}, -1")
for k in range(4): a(f"v_mov_b32 v{8+k}, 0")
a("s_waitcnt lgkmcnt(0)")
a("s_cmp_lt_u32 s31, 16")
a("s_cbranch_scc1 L_sv_nox")
a("s_mov_b32 exec_hi, 0x00ffffff")
a("global_load_dwordx4 v[8:11], v2, s[4:5]")
a("s_mov_b32 exec_hi, -1")
a("s_barrier")
a("L_sv_nox:")
load_tag()
prof_zero()
gather_pre()
a("s_cmp_lt_u32 s31, 24")
a("s_cbranch_scc0 L_sv_noo")
a("global_store_dwordx4 v2, v[4:7], s[56:57] sc1")
a("global_store_dwordx4 v2, v[4:7], s[56:57] offset:1024 sc1")
a("L_sv_noo:")
a("s_lshl_b32 s35, s30, 4")
a("s_add_u32 s35, s35, s31")
a("s_max_u32 s35, s35, 16")
a("s_sub_u32 s47, s35, 16")
a("s_cmp_lt_u32 s31, 16")
a("s_cbranch_scc1 L_sv_nof")
a("s_lshl_b32 s35, s47, 7")
a(f"s_add_u32 s35, s35, {WS_F}")
base_add(36, 28, "s35")
base_add(38, 36, 8 * 16384)
a("v_lshrrev_b32 v13, 3, v0")
a("v_lshlrev_b32 v13, 14, v13")
a("v_and_b32 v14, 7, v0")
a("v_lshl_add_u32 v13, v14, 4, v13")
a("s_cmp_eq_u32 s31, 31")
a("s_cselect_b32 s35, 0, -1")
for k in range(4): a(f"v_mov_b32 v{4+k}, s35")
a("global_store_dwordx4 v13, v[4:7], s[36:37] sc1")
a("s_mov_b32 exec_hi, 0x0000ffff")
a("global_store_dwordx4 v13, v[4:7], s[38:39] sc1")
a("s_mov_b32 exec_hi, -1")
a("L_sv_nof:")
a("v_lshlrev_b32 v13, 3, v0")
a("v_mov_b32 v14, 0"); a("v_mov_b32 v15, 0")
a(f"ds_write_b64 v13, v[14:15] offset:{ZR}")
a("v_lshlrev_b32 v13, 2, v0")
a("v_mov_b32 v16, 0xff800000")
a("v_cmp_gt_u32 vcc, 16, v0")
a("v_cndmask_b32 v16, v14, v16, vcc")
a("s_mov_b32 exec_hi, 0")
a(f"ds_write_b32 v13, v16 offset:{SMAX}")
a("s_mov_b64 exec, -1")
a("s_lshl_b32 s35, s47, 2")
a(f"s_add_u32 s35, s35, {WS_R2}")
base_add(38, 28, "s35")
a("s_lshl_b32 s35, s30, 7")
a(f"s_add_u32 s35, s35, {WS_R1}")
base_add(40, 28, "s35")
a("s_lshl_b32 s35, s30, 10")
a("s_lshl_b32 s45, s31, 4")
a("s_add_u32 s35, s35, s45")
a(f"s_add_u32 s35, s35, {WS_S}")
base_add(42, 28, "s35")
a("v_and_b32 v36, 1, v0")
a("v_lshlrev_b32 v37, 9, v36")
a("v_lshlrev_b32 v36, 5, v36")
a("s_waitcnt lgkmcnt(0)")
make_tag()

def flags_store(r1, r2):
    a("v_mov_b32 v14, s34")
    a("s_lshl_b32 s35, s31, 2")
    a("v_mov_b32 v13, s35")
    a("s_mov_b64 exec, 1")
    if r1: a("global_store_dword v13, v14, s[40:41] sc1")
    if r2: a("global_store_dword v3, v14, s[38:39] sc1")
    a("s_mov_b64 exec, -1")
def stats_publish():
    a(f"ds_read_b128 v[20:23], v36 offset:{SMAX}")
    a(f"ds_read_b128 v[24:27], v36 offset:{SMAX+16}")
    a(f"ds_read_b128 v[28:31], v36 offset:{LSUM}")
    a(f"ds_read_b128 v[32:35], v36 offset:{LSUM+16}")
    a("s_waitcnt lgkmcnt(0)")
    a("v_max3_f32 v40, v20, v21, v22")
    a("v_max3_f32 v23, v23, v24, v25")
    a("v_add_f32 v28, v28, v29"); a("v_add_f32 v30, v30, v31"); a("v_add_f32 v32, v32, v33"); a("v_add_f32 v34, v34, v35")
    a("v_max3_f32 v40, v40, v26, v27")
    a("v_add_f32 v28, v28, v30"); a("v_add_f32 v32, v32, v34")
    a("v_max_f32 v40, v40, v23")
    a("v_add_f32 v42, v28, v32")
    a("v_mov_b32 v41, s34")
    a("v_mov_b32 v43, s34")
    a("s_mov_b64 exec, 3")
    a("global_store_dwordx4 v37, v[40:43], s[42:43] sc1")
    a("s_mov_b64 exec, -1")
def o_gather_pre():
    a("s_lshl_b32 s35, s30, 16")
    a("s_sub_u32 s45, s31, 16")
    a("s_lshl_b32 s46, s45, 8")
    a("s_add_u32 s35, s35, s46")
    a(f"s_add_u32 s35, s35, {WS_O}")
    base_add(60, 28, "s35")
    base_add(46, 60, 16384)
    base_add(48, 60, 32768)
    a("s_lshl_b32 s35, s30, 10")
    a("s_lshr_b32 s45, s45, 2")
    a("s_lshl_b32 s45, s45, 9")
    a("s_add_u32 s35, s35, s45")
    a(f"s_add_u32 s35, s35, {WS_S}")
    base_add(52, 28, "s35")
    a("v_and_b32 v100, 7, v0")
    a("v_lshlrev_b32 v101, 4, v100")
    a("v_lshlrev_b32 v100, 11, v100")
    a("v_lshrrev_b32 v102, 3, v0")
    a("v_lshl_add_u32 v100, v102, 5, v100")
    a("v_lshlrev_b32 v102, 4, v102")
    a("v_min_u32 v103, 23, v0")
    a("v_lshlrev_b32 v103, 2, v103")
def o_gather(lt):
    b = 40
    light(lambda: a("global_load_dword v81, v103, s[40:41] sc1"), lambda: a("v_cmp_ne_u32 vcc, s34, v81"), done_if_nz=False)
    stamp(6)
    def issue():
        for i in range(3):
            a(f"global_load_dwordx4 v[{b+24+4*i}:{b+27+4*i}], v101, s[52:53] offset:{128*i} sc1")
        for i, sb in enumerate((60, 46, 48)):
            a(f"global_load_dwordx4 v[{b+8*i}:{b+8*i+3}], v100, s[{sb}:{sb+1}] sc1")
            a(f"global_load_dwordx4 v[{b+8*i+4}:{b+8*i+7}], v100, s[{sb}:{sb+1}] offset:16 sc1")
    def check():
        for k in range(8):
            a(f"v_max3_u32 v{88+k}, v{b+3*k}, v{b+3*k+1}, v{b+3*k+2}")
        for i in range(6):
            a(f"v_xor_b32 v{80+i}, s34, v{b+25+2*i}")
        a("v_max3_u32 v88, v88, v89, v90")
        a("v_max3_u32 v91, v91, v92, v93")
        a("v_or3_b32 v80, v80, v81, v82")
        a("v_or3_b32 v83, v83, v84, v85")
        a("v_max3_u32 v88, v88, v94, v95")
        a("v_or_b32 v80, v80, v83")
        a("v_max_u32 v88, v88, v91")
        a("v_cmp_ne_u32 s[54:55], 0, v80")
        a("v_cmp_eq_u32 vcc, -1, v88")
        a("s_or_b64 vcc, vcc, s[54:55]")
    pollm(issue, check)
    stamp(4)
    m = [b + 24, b + 28, b + 32]; l = [b + 26, b + 30, b + 34]
    a(f"v_max3_f32 v80, v{m[0]}, v{m[1]}, v{m[2]}")
    for pat in ["quad_perm:[1,0,3,2]", "quad_perm:[2,3,0,1]", "row_half_mirror"]:
        a(f"v_max_f32_dpp v80, v80, v80 {pat} row_mask:0xf bank_mask:0xf")
    for i in range(3): a(f"v_sub_f32 v{81+i}, v{m[i]}, v80")
    for i in range(3): a(f"v_mul_f32 v{81+i}, {hex(f2u(CEXP))}, v{81+i}")
    for i in range(3): a(f"v_exp_f32 v{81+i}, v{81+i}")
    a(f"v_mul_f32 v85, v81, v{l[0]}")
    for k in range(8): a(f"v_mul_f32 v{86+k}, v81, v{b+k}")
    a(f"v_fmac_f32 v85, v82, v{l[1]}")
    for k in range(8): a(f"v_fmac_f32 v{86+k}, v82, v{b+8+k}")
    a(f"v_fmac_f32 v85, v83, v{l[2]}")
    for k in range(8): a(f"v_fmac_f32 v{86+k}, v83, v{b+16+k}")
    for pat in ["quad_perm:[1,0,3,2]", "quad_perm:[2,3,0,1]", "row_half_mirror"]:
        for r in range(85, 94):
            a(f"v_add_f32_dpp v{r}, v{r}, v{r} {pat} row_mask:0xf bank_mask:0xf")
    a("v_rcp_f32 v85, v85")
    for k in range(8): a(f"v_mul_f32 v{86+k}, v{86+k}, v85")
    for k in range(4): a(f"v_cvt_pk_bf16_f32 v{96+k}, v{86+2*k}, v{87+2*k}")
    a(f"ds_write_b128 v102, v[96:99] offset:{OPAIR}")
    barrier()
def sum7(stride):
    for w in range(7):
        a(f"ds_read_b64 v[{20+2*w}:{21+2*w}], v13 offset:{PART+stride*w}")
    a("s_waitcnt lgkmcnt(0)")
    for k in range(2):
        a(f"v_add_f32 v{20+k}, v{20+k}, v{22+k}")
        a(f"v_add_f32 v{24+k}, v{24+k}, v{26+k}")
        a(f"v_add_f32 v{28+k}, v{28+k}, v{30+k}")
    for k in range(2):
        a(f"v_add_f32 v{20+k}, v{20+k}, v{24+k}")
        a(f"v_add_f32 v{28+k}, v{28+k}, v{32+k}")
    for k in range(2):
        a(f"v_add_f32 v{20+k}, v{20+k}, v{28+k}")

a("s_cmp_lt_u32 s31, 16")
a("s_cbranch_scc1 L_svX")
a("s_branch L_svY")

a("L_svX:")
final_pre()
a("global_load_ushort v104, v20, s[4:5]")
a("global_load_ushort v105, v20, s[22:23]")
a("v_mov_b32 v106, v20")
a("s_mov_b64 s[6:7], s[24:25]")
if XD:
    a("s_waitcnt vmcnt(0)")
    a("s_barrier")
a("s_barrier")
stamp(1)
sq_issue()
sq_finish()
a("s_waitcnt vmcnt(0)")
flags_store(True, False)
barrier()
barrier()
combine(7)
stats_publish()
stamp(5)
final_gather()
a("v_and_b32 v26, 31, v0")
a("v_lshlrev_b32 v26, 2, v26")
for k in range(8):
    a(f"ds_read_b32 v{80+k}, v26 offset:{FIN+128*k}")
a("v_lshlrev_b32 v104, 16, v104")
a("v_lshlrev_b32 v105, 16, v105")
a("v_add_f32 v104, v104, v105")
a("s_waitcnt lgkmcnt(0)")
for k in range(4): a(f"v_add_f32 v{80+2*k}, v{80+2*k}, v{81+2*k}")
a("v_add_f32 v80, v80, v82")
a("v_add_f32 v84, v84, v86")
a("v_add_f32 v80, v80, v84")
a("v_add_f32 v80, v80, v104")
a("v_cvt_pk_bf16_f32 v80, v80, v80")
a("s_mov_b32 exec_hi, 0")
a("global_store_short v106, v80, s[6:7]")
a("s_mov_b64 exec, -1")
a("s_cmp_eq_u32 s2, 0")
a("s_cbranch_scc0 L_fin")
a("v_mov_b32 v14, s34")
a("v_mov_b32 v13, 0")
a("s_mov_b64 exec, 1")
a("global_store_dword v13, v14, s[28:29] sc1")
a("s_mov_b64 exec, -1")
a("s_branch L_fin")

a("L_svY:")
a("s_mul_i32 s46, s30, 7")
a("s_max_u32 s47, s31, 24")
a("s_min_u32 s47, s47, 30")
a("s_add_u32 s46, s46, s47")
a("s_sub_u32 s46, s46, 24")
a("s_lshl_b32 s35, s46, 6")
a("v_and_b32 v13, 15, v0")
a("v_lshlrev_b32 v13, 2, v13")
a("v_add_u32 v13, s35, v13")
a("global_load_dword v44, v13, s[18:19]")
a("s_cmp_lt_u32 s31, 24")
a("s_cbranch_scc1 L_svY_a")
a("s_waitcnt vmcnt(3)")
a("s_branch L_svY_b")
a("L_svY_a:")
a("s_waitcnt vmcnt(5)")
a("L_svY_b:")
layernorm(8, 20, 28)
a("s_mov_b32 exec_hi, 0x00ffffff")
a(f"ds_write_b128 v2, v[8:11] offset:{XB}")
a("s_mov_b32 exec_hi, -1")
stamp(1)
barrier()
a("v_and_b32 v13, 31, v0")
a("v_lshlrev_b32 v45, 4, v13")
a("v_lshlrev_b32 v13, 3, v13")
a("s_sub_u32 s35, s31, 16")
a("s_and_b32 s47, s35, 7")
a("s_lshl_b32 s35, s47, 9")
a("s_lshl_b32 s45, s30, 12")
a("s_add_u32 s35, s35, s45")
a(f"s_add_u32 s35, s35, {WS_P}")
base_add(54, 28, "s35")
a("s_cmp_lt_u32 s31, 24")
a("s_cbranch_scc1 L_sv_recv")
layernorm(8, 20, 28)
a("s_mov_b32 exec_hi, 0x00ffffff")
a(f"ds_write_b128 v2, v[8:11] offset:{YB}")
a("s_mov_b32 exec_hi, -1")
a("s_waitcnt vmcnt(0)")
barrier()
sum7(256)
a("v_mov_b32 v22, v21")
a("v_mov_b32 v21, s34")
a("v_mov_b32 v23, s34")
a("s_mov_b32 exec_hi, 0")
a("global_store_dwordx4 v45, v[20:23], s[54:55] sc1")
a("s_mov_b32 exec_hi, -1")
flags_store(False, True)
stamp(2)
a("s_cmp_eq_u32 s31, 31")
a("s_cbranch_scc1 L_fin")
barrier()
a("s_barrier")
a("v_and_b32 v13, 15, v0")
a("v_lshlrev_b32 v14, 2, v13")
a("v_lshlrev_b32 v13, 3, v13")
barrier()
sum7(128)
a("v_cvt_pk_bf16_f32 v18, v20, v21")
a("v_lshlrev_b32 v16, 16, v18")
a("v_and_b32 v17, 0xffff0000, v18")
a("v_lshlrev_b32 v18, 16, v44")
a("v_and_b32 v19, 0xffff0000, v44")
a("v_add_f32 v16, v16, v18")
a("v_add_f32 v17, v17, v19")
a("v_cvt_pk_bf16_f32 v18, v16, v17")
a("v_lshlrev_b32 v16, 16, v18")
a("v_and_b32 v17, 0xffff0000, v18")
K0 = math.sqrt(2.0 / math.pi); K1 = 0.044715
c1 = -2.0 * K0 * math.log2(math.e); c3 = c1 * K1
a(f"v_mov_b32 v22, {hex(f2u(c1))}")
for k in range(2): a(f"v_mul_f32 v{18+k}, v{16+k}, v{16+k}")
for k in range(2): a(f"v_fmamk_f32 v{18+k}, v{18+k}, {hex(f2u(c3))}, v22")
for k in range(2): a(f"v_mul_f32 v{18+k}, v{18+k}, v{16+k}")
for k in range(2): a(f"v_exp_f32 v{18+k}, v{18+k}")
for k in range(2): a(f"v_add_f32 v{18+k}, 1.0, v{18+k}")
for k in range(2): a(f"v_rcp_f32 v{18+k}, v{18+k}")
for k in range(2): a(f"v_mul_f32 v{16+k}, v{16+k}, v{18+k}")
a("v_cvt_pk_bf16_f32 v16, v16, v17")
a(f"ds_write_b32 v14, v16 offset:{HB}")
stamp(3)
barrier()
a("s_branch L_fin")
a("L_sv_recv:")
a("v_and_b32 v14, 15, v0")
a("v_mul_u32_u24 v12, 12, v14")
a("v_lshlrev_b32 v15, 4, v14")
a("v_lshrrev_b32 v14, 4, v0")
a("v_lshl_add_u32 v15, v14, 11, v15")
a("s_mul_i32 s35, s47, 192")
a("s_lshl_b32 s45, s30, 16")
a("s_add_u32 s35, s35, s45")
a(f"s_add_u32 s35, s35, {WS_Q}")
base_add(36, 28, "s35")
a("v_mov_b32 v43, s34")
o_gather_pre()
a("s_waitcnt vmcnt(0)")
barrier()
a("global_load_dwordx4 v[48:51], v45, s[54:55] sc1")
sum7(256)
lp = a.newlabel("L_px"); dn = a.newlabel("L_pxd")
a.label(lp)
a("s_waitcnt vmcnt(0)")
a("v_xor_b32 v34, s34, v49")
a("v_xor_b32 v35, s34, v51")
a("v_or_b32 v34, v34, v35")
a("v_cmp_ne_u32 vcc, 0, v34")
a(f"s_cbranch_vccz {dn}")
a("global_load_dwordx4 v[48:51], v45, s[54:55] sc1")
guard(lp)
a("s_waitcnt vmcnt(0)")
a.label(dn)
a("v_add_f32 v20, v20, v48")
a("v_add_f32 v21, v21, v50")
a("v_cvt_pk_bf16_f32 v30, v20, v21")
for k in range(3):
    a(f"ds_bpermute_b32 v{40+k}, v12, v30 offset:{4*k}")
a("s_mov_b32 exec_lo, 0x07ff07ff")
a("s_mov_b32 exec_hi, 0x07ff07ff")
a("s_waitcnt lgkmcnt(0)")
for k in range(6):
    a("global_store_dwordx4 v15, v[40:43], s[36:37] sc1")
    if k < 5: base_add(36, 36, 8192)
a("s_mov_b64 exec, -1")
flags_store(True, True)
a("s_barrier")
stamp(2)
sq_issue()
sq_finish()
barrier()
barrier()
combine(2)
stats_publish()
o_gather(True)

a("L_fin:")
if PROFILE:
    stamp(7)
    a("s_load_dwordx2 s[36:37], s[0:1], 88")
    a("s_waitcnt lgkmcnt(0) vmcnt(0)")
    a("s_mov_b64 exec, 1")
    a("s_not_b32 s35, s96")
    a("v_mov_b32 v13, 0")
    a("v_mov_b32 v16, s35")
    a("global_atomic_umax v13, v16, s[36:37]")
    a("v_mov_b32 v17, s96")
    a("global_atomic_umax v13, v17, s[36:37] offset:4")
    a("v_mov_b32 v18, s24")
    a("global_atomic_umax v13, v18, s[36:37] offset:8")
    a("s_cmp_lt_u32 s31, 16")
    a("s_cbranch_scc0 L_dY")
    a("v_mov_b32 v19, s100")
    a("global_atomic_umax v13, v19, s[36:37] offset:12")
    a("v_mov_b32 v20, s62")
    a("global_atomic_umax v13, v20, s[36:37] offset:16")
    a("v_mov_b32 v21, s98")
    a("global_atomic_umax v13, v21, s[36:37] offset:32")
    a("s_branch L_end")
    a("L_dY:")
    a("s_cmp_eq_u32 s3, 7")
    a("s_cbranch_scc0 L_dYw")
    a("v_mov_b32 v19, s100")
    a("global_atomic_umax v13, v19, s[36:37] offset:20")
    a("v_mov_b32 v20, s98")
    a("global_atomic_umax v13, v20, s[36:37] offset:28")
    a("s_branch L_end")
    a("L_dYw:")
    a("v_mov_b32 v19, s50")
    a("global_atomic_umax v13, v19, s[36:37] offset:24")
a("L_end:")

open(OUT, "w").write(wrap(a.text(), 256, 512, LDS_BYTES, vgpr=128, sgpr=102))
print("wrote", OUT, len(a.lines), "lines")
```

```python
import sys, math, struct
sys.path.insert(0, "gen"); sys.path.insert(0, "exp")
from asmlib import Asm
from gen_common import wrap

PROFILE = "--prof" in sys.argv
def opt(name, default):
    for x in sys.argv:
        if x.startswith(f"--{name}="): return int(x.split("=")[1])
    return default
SLP = opt("slp", 2)
PSLP = opt("pslp", 0)
QSLP = opt("qslp", 1)
VA = opt("va", 4)
XD = opt("xd", 1)
MD = opt("md", 0)
KW = opt("kw", 8)
MW = opt("mw", 0)
OUT = [x for x in sys.argv[1:] if not x.startswith("--")][0]

WS_R2  = 0x1000
WS_R1  = 0x2000
WS_P   = 0x3000
WS_S   = 0x20000
WS_O   = 0x80000
WS_F   = 0x100000
WS_Q   = 0x200000
WS_PROF = 0x8000000
QHS = 640
ZR = 0x500
SMAX = 0x700; LSUM = 0x740
OPAIR = 0x780
XB = 0x800
YB = 0xB80
HB = 0xF00
PART = 0xF80
FIN = 0xF80
OB = 0x1800
LDS_BYTES = 0x5800

CEXP = 0.0625 * math.log2(math.e)
def f2u(f): return struct.unpack("<I", struct.pack("<f", f))[0]

a = Asm()
STM = [96, 98, 100, 26, 0, 62, 50, 24]
def stamp(k):
    if PROFILE:
        r = STM[k]
        a(f"s_memrealtime s[{r}:{r+1}]")
def base_add(dst, src, offs):
    a(f"s_add_u32 s{dst}, s{src}, {offs}")
    a(f"s_addc_u32 s{dst+1}, s{src+1}, 0")
def barrier():
    a("s_waitcnt lgkmcnt(0)")
    a("s_barrier")
def guard(lp):
    a("s_add_u32 s44, s44, 1")
    a("s_cmp_gt_u32 s44, 0x40000")
    a(f"s_cbranch_scc0 {lp}")
def pollm(issue, check):
    lp = a.newlabel("L_pl"); dn = a.newlabel("L_pd")
    a.label(lp)
    issue()
    a(f"s_waitcnt vmcnt(0)")
    check()
    a(f"s_cbranch_vccz {dn}")
    a("s_mov_b64 exec, vcc")
    if PSLP: a(f"s_sleep {PSLP}")
    guard(lp)
    a.label(dn)
    a("s_mov_b64 exec, -1")
def light(load, check, done_if_nz=True, slp=None):
    lp = a.newlabel("L_lt"); dn = a.newlabel("L_ld")
    slp = SLP if slp is None else slp
    a.label(lp)
    load()
    a("s_waitcnt vmcnt(0)")
    check()
    a(f"s_cbranch_vccnz {dn}" if done_if_nz else f"s_cbranch_vccz {dn}")
    if slp: a(f"s_sleep {slp}")
    guard(lp)
    a.label(dn)
def preperm(src_a, src_b, dst, n=4):
    for k in range(n):
        a(f"v_perm_b32 v{dst+2*k}, v{src_b+k}, v{src_a+k}, s32")
        a(f"v_perm_b32 v{dst+2*k+1}, v{src_b+k}, v{src_a+k}, s33")
def dots(acc, pp, coef, n=8, first=False):
    for k in range(n):
        c = "0" if first else f"v{acc+k}"
        a(f"v_dot2_f32_bf16 v{acc+k}, v{pp+k}, {coef}, {c}")
def reduce_hi(acc, extra_ror):
    for k in range(4): a(f"v_permlane32_swap_b32 v{acc+k}, v{acc+k+4}")
    for k in range(4): a(f"v_add_f32 v{acc+k}, v{acc+k}, v{acc+k+4}")
    for k in range(2): a(f"v_permlane16_swap_b32 v{acc+k}, v{acc+k+2}")
    for k in range(2): a(f"v_add_f32 v{acc+k}, v{acc+k}, v{acc+k+2}")
    for r in extra_ror:
        for k in range(2):
            a(f"v_add_f32_dpp v{acc+k}, v{acc+k}, v{acc+k} row_ror:{r} row_mask:0xf bank_mask:0xf")
def red1(op, d, src, full=False):
    for pat in ["quad_perm:[1,0,3,2]", "quad_perm:[2,3,0,1]", "row_half_mirror", "row_mirror"]:
        a(f"{op}_dpp v{d}, v{src}, v{src} {pat} row_mask:0xf bank_mask:0xf")
        src = d
    a(f"{op}_dpp v{d}, v{d}, v{d} row_bcast:15 row_mask:0xa bank_mask:0xf")
    if full: a(f"{op}_dpp v{d}, v{d}, v{d} row_bcast:31 row_mask:0xc bank_mask:0xf")
def wave_sum_to_sgpr(v, sdst):
    red1("v_add_f32", v, v, full=True)
    a(f"v_readlane_b32 s{sdst}, v{v}, 63")

def layernorm(pk, f, t):
    for k in range(4):
        a(f"v_lshlrev_b32 v{f+2*k}, 16, v{pk+k}")
        a(f"v_and_b32 v{f+2*k+1}, 0xffff0000, v{pk+k}")
    a(f"v_add_f32 v{t}, v{f}, v{f+1}")
    a(f"v_add_f32 v{t+1}, v{f+2}, v{f+3}")
    a(f"v_add_f32 v{t+2}, v{f+4}, v{f+5}")
    a(f"v_add_f32 v{t+3}, v{f+6}, v{f+7}")
    a(f"v_add_f32 v{t}, v{t}, v{t+1}")
    a(f"v_add_f32 v{t+2}, v{t+2}, v{t+3}")
    a(f"v_add_f32 v{t}, v{t}, v{t+2}")
    wave_sum_to_sgpr(t, 35)
    a(f"v_mov_b32 v{t+1}, {hex(f2u(1.0/448))}")
    a(f"v_mul_f32 v{t+2}, s35, v{t+1}")
    a(f"v_mov_b32 v{t}, 0")
    a(f"v_mov_b32 v{t+5}, 0")
    a("s_mov_b32 exec_hi, 0x00ffffff")
    for k in range(0, 8, 2):
        a(f"v_sub_f32 v{t+3}, v{f+k}, v{t+2}")
        a(f"v_sub_f32 v{t+4}, v{f+k+1}, v{t+2}")
        a(f"v_fmac_f32 v{t}, v{t+3}, v{t+3}")
        a(f"v_fmac_f32 v{t+5}, v{t+4}, v{t+4}")
    a("s_mov_b32 exec_hi, -1")
    a(f"v_add_f32 v{t}, v{t}, v{t+5}")
    wave_sum_to_sgpr(t, 35)
    a(f"v_mul_f32 v{t+3}, s35, v{t+1}")
    a(f"v_cvt_pk_bf16_f32 v{t+4}, v{t+2}, v{t+3}")
    a(f"v_lshlrev_b32 v{t+2}, 16, v{t+4}")
    a(f"v_and_b32 v{t+3}, 0xffff0000, v{t+4}")
    a(f"v_add_f32 v{t+3}, {hex(f2u(1e-5))}, v{t+3}")
    a(f"v_cvt_pk_bf16_f32 v{t+3}, v{t+3}, v{t+3}")
    a(f"v_lshlrev_b32 v{t+3}, 16, v{t+3}")
    a(f"v_sqrt_f32 v{t+3}, v{t+3}")
    for k in range(8):
        a(f"v_sub_f32 v{f+k}, v{f+k}, v{t+2}")
    a(f"v_cvt_pk_bf16_f32 v{t+3}, v{t+3}, v{t+3}")
    a(f"v_lshlrev_b32 v{t+3}, 16, v{t+3}")
    a(f"v_rcp_f32 v{t+4}, v{t+3}")
    for k in range(4):
        a(f"v_cvt_pk_bf16_f32 v{pk+k}, v{f+2*k}, v{f+2*k+1}")
    for k in range(4):
        a(f"v_lshlrev_b32 v{f+2*k}, 16, v{pk+k}")
        a(f"v_and_b32 v{f+2*k+1}, 0xffff0000, v{pk+k}")
    for k in range(8):
        a(f"v_mul_f32 v{t}, v{f+k}, v{t+4}")
        a(f"v_fma_f32 v{t+1}, -v{t}, v{t+3}, v{f+k}")
        a(f"v_fma_f32 v{f+k}, v{t+1}, v{t+4}, v{t}")
    for k in range(4):
        a(f"v_cvt_pk_bf16_f32 v{pk+k}, v{f+2*k}, v{f+2*k+1}")
    a("s_mov_b32 exec_lo, 0")
    a("s_mov_b32 exec_hi, 0xff000000")
    for k in range(4): a(f"v_mov_b32 v{pk+k}, 0")
    a("s_mov_b64 exec, -1")

def load_tag(): a("s_load_dword s34, s[28:29], 0")
def make_tag():
    a("s_mul_i32 s34, s34, 1664525")
    a("s_add_u32 s34, s34, 1013904223")

stamp(0)
a("s_cmp_ge_u32 s2, 256")
a("s_cbranch_scc1 L_end")
a("s_load_dwordx16 s[4:19], s[0:1], 0")
a("s_load_dwordx8 s[20:27], s[0:1], 64")
a("s_load_dwordx2 s[28:29], s[0:1], 96")
a("v_lshrrev_b32 v1, 6, v0")
a("v_and_b32 v0, 63, v0")
a("v_readfirstlane_b32 s3, v1")
a("s_and_b32 s30, s2, 7")
a("s_lshr_b32 s31, s2, 3")
a("s_add_u32 s3, s3, 7")
a("s_and_b32 s3, s3, 7")
a("s_mov_b32 s32, 0x05040100")
a("s_mov_b32 s33, 0x07060302")
a("s_mov_b32 s44, 0")
if PROFILE:
    for r in (98, 100, 62, 50): a(f"s_mov_b32 s{r}, 0")
a("s_cmp_eq_u32 s3, 7")
a("s_cbranch_scc1 L_service")
a("s_cmp_lt_u32 s31, 16")
a("s_cbranch_scc1 L_X")
a("s_cmp_lt_u32 s31, 24")
a("s_cbranch_scc1 L_Yq")
a("s_cmp_lt_u32 s31, 31")
a("s_cbranch_scc1 L_Ym")
a("s_branch L_Ys")

def prof_zero():
    if PROFILE:
        a("s_mov_b32 s26, 0"); a("s_mov_b32 s0, 0")

def tile_off():
    a("s_lshl_b32 s35, s35, 13")
    a("s_lshl_b32 s45, s30, 22")
    a("s_add_u32 s35, s35, s45")
    a("s_add_u32 s35, s35, 0x300000")
def tile_bases():
    base_add(36, 6, "s35")
    base_add(38, 36, 4096)
    base_add(40, 8, "s35")
    base_add(42, 40, 4096)
def k_voff():
    a("v_and_b32 v2, 7, v0")
    a("v_lshlrev_b32 v2, 9, v2")
    a("v_lshrrev_b32 v3, 3, v0")
    a("v_lshl_add_u32 v2, v3, 4, v2")
    a("v_lshlrev_b32 v3, 4, v0")
def k_loads():
    for oct in range(2):
        for ls in range(4):
            r = 32 + (oct * 4 + ls) * 4
            a(f"global_load_dwordx4 v[{r}:{r+3}], v2, s[{36+2*oct}:{37+2*oct}] offset:{ls*128} nt")
def v_loads(k0, k1):
    for k in range(k0, k1):
        b = 40 if k < 4 else 42
        a(f"global_load_dwordx4 v[{64+4*k}:{67+4*k}], v3, s[{b}:{b+1}] offset:{(k%4)*1024} nt")
def tile_pre():
    a("v_and_b32 v6, 1, v0")
    a(f"v_mul_u32_u24 v6, {QHS}, v6")
    a("v_lshrrev_b32 v7, 4, v0")
    a("v_lshlrev_b32 v7, 5, v7")
    a("v_bfe_u32 v8, v0, 1, 1")
    a("v_lshl_add_u32 v7, v8, 4, v7")
    a(f"v_add_u32 v6, v6, v7")
    a(f"v_add_u32 v7, {ZR}, v7")
    a("v_bfe_u32 v8, v0, 2, 2")
    a("v_cmp_eq_u32 vcc, 0, v8")
    a("v_cndmask_b32 v4, v7, v6, vcc")
    a("v_cmp_eq_u32 vcc, 1, v8")
    a("v_cndmask_b32 v5, v7, v6, vcc")
    a("v_mov_b32 v15, 0xff800000")
    a("s_mov_b32 s46, 0x00ff00ff")
    a("s_mov_b32 s47, 0x00ff00ff")
    a("v_lshrrev_b32 v31, 5, v0")
    a("v_lshlrev_b32 v29, 5, v31")
    a("s_lshl_b32 s35, s3, 2")
    a("v_add_u32 v28, s35, v29")
    a("v_lshlrev_b32 v31, 2, v31")
    a("s_lshl_b32 s35, s3, 11")
    a("v_lshl_add_u32 v30, v0, 5, s35")
def gather_pre():
    a("s_lshl_b32 s35, s31, 11")
    a("s_lshl_b32 s45, s30, 16")
    a("s_add_u32 s35, s35, s45")
    a(f"s_add_u32 s45, s35, {WS_O}")
    base_add(56, 28, "s45")
    a(f"s_add_u32 s35, s35, {WS_Q}")
    a("s_mul_i32 s45, s3, 192")
    a("s_add_u32 s35, s35, s45")
    base_add(58, 28, "s35")
    a("s_lshr_b32 s35, s3, 2")
    a(f"s_mul_i32 s35, s35, {QHS}")
    a("s_and_b32 s45, s3, 3")
    a("s_lshl_b32 s45, s45, 7")
    a("s_add_u32 s35, s35, s45")
    a("v_lshl_add_u32 v19, v0, 2, s35")
    a("s_lshl_b32 s35, s3, 8")
    a("v_lshl_add_u32 v17, v0, 2, s35")
WIN = [8, 64, 80]
def sq_issue():
    for k in range(3):
        a(f"s_load_dwordx16 s[{WIN[k]}:{WIN[k]+15}], s[58:59], {64*k} glc")
def sq_finish():
    lp = a.newlabel("L_sq"); rt = a.newlabel("L_sqr"); dn = a.newlabel("L_sqd")
    a.label(lp)
    a("s_waitcnt lgkmcnt(0)")
    for gi in range(11):
        r = WIN[gi // 4] + 4 * (gi % 4) + 3
        a(f"s_cmp_lg_u32 s{r}, s34")
        a(f"s_cbranch_scc1 {rt}")
    a(f"s_branch {dn}")
    a.label(rt)
    if QSLP: a(f"s_sleep {QSLP}")
    sq_issue()
    guard(lp)
    a("s_waitcnt lgkmcnt(0)")
    a.label(dn)
    for i in range(32):
        gi, k = divmod(i, 3)
        r = WIN[gi // 4] + 4 * (gi % 4) + k
        a(f"v_writelane_b32 v8, s{r}, {i}")
    a("s_mov_b32 exec_hi, 0")
    a("ds_write_b32 v19, v8")
    a("s_mov_b32 exec_hi, -1")
    barrier()
def tile_main(mid=None, extra=0, ptmp=(112, 120), stmp=112):
    for oct in range(2):
        for ls in range(4):
            r = 96 + (oct * 4 + ls) * 4
            a(f"ds_read_b128 v[{r}:{r+3}], v{4+oct} offset:{ls*128}")
    a(f"s_waitcnt vmcnt(8) lgkmcnt(0)")
    stamp(2)
    first = True
    for oct in range(2):
        for ls in range(4):
            ra = 96 + (oct * 4 + ls) * 4; rb = 32 + (oct * 4 + ls) * 4
            a(f"v_mfma_f32_16x16x32_bf16 v[8:11], v[{ra}:{ra+3}], v[{rb}:{rb+3}], {'0' if first else 'v[8:11]'}")
            first = False
    if mid: mid()
    a("v_add_f32_dpp v12, v10, v8 row_ror:8 row_mask:0xf bank_mask:0xf")
    a("v_add_f32_dpp v13, v11, v9 row_ror:8 row_mask:0xf bank_mask:0xf")
    a("v_permlane32_swap_b32 v12, v13")
    a("v_cvt_pk_bf16_f32 v12, v12, v12")
    a("v_lshlrev_b32 v12, 16, v12")
    a("v_cndmask_b32 v12, v15, v12, s[46:47]")
    red1("v_max_f32", 16, 12)
    a("s_mov_b32 exec_lo, 0x10000")
    a("s_mov_b32 exec_hi, 0x10000")
    a(f"ds_write_b32 v28, v16 offset:{SMAX}")
    a("s_mov_b64 exec, -1")
    barrier()
    z = stmp
    a(f"ds_read_b128 v[{z}:{z+3}], v29 offset:{SMAX}")
    a(f"ds_read_b128 v[{z+4}:{z+7}], v29 offset:{SMAX+16}")
    a("s_waitcnt lgkmcnt(0)")
    a(f"v_max3_f32 v{z}, v{z}, v{z+1}, v{z+2}")
    a(f"v_max3_f32 v{z+3}, v{z+3}, v{z+4}, v{z+5}")
    a(f"v_max3_f32 v{z}, v{z}, v{z+6}, v{z+7}")
    a(f"v_max_f32 v{z}, v{z}, v{z+3}")
    a(f"v_sub_f32 v12, v12, v{z}")
    a(f"v_mul_f32 v12, {hex(f2u(CEXP))}, v12")
    a("v_exp_f32 v12, v12")
    a("v_mov_b32_dpp v14, v12 quad_perm:[2,3,0,1] row_mask:0xf bank_mask:0xf")
    a("v_cvt_pk_bf16_f32 v14, v12, v14")
    for m, L in enumerate((0, 4, 16, 20)):
        a(f"ds_bpermute_b32 v{48+m}, v31, v14 offset:{4*L}")
        a(f"ds_bpermute_b32 v{52+m}, v31, v14 offset:{4*(L+32)}")
    red1("v_add_f32", 16, 12)
    a("s_mov_b32 exec_lo, 0x10000")
    a("s_mov_b32 exec_hi, 0x10000")
    a(f"ds_write_b32 v28, v16 offset:{LSUM}")
    a("s_mov_b64 exec, -1")
    a("s_waitcnt lgkmcnt(0)")
    stamp(3)
    for m in range(4):
        a(f"s_waitcnt vmcnt({6-2*m+extra})")
        ra = 64 + 8 * m; rb = ra + 4
        t = ptmp[m & 1]
        preperm(ra, rb, t, n=4)
        dots(32, t, f"v{48+m}", n=8, first=(m == 0))
        dots(40, t, f"v{52+m}", n=8, first=(m == 0))
    stamp(4)
    for k in range(8): a(f"v_permlane32_swap_b32 v{32+k}, v{40+k}")
    for k in range(8): a(f"v_add_f32 v{32+k}, v{32+k}, v{40+k}")
    a(f"ds_write_b128 v30, v[32:35] offset:{OB}")
    a(f"ds_write_b128 v30, v[36:39] offset:{OB+16}")
def combine(nt):
    s0 = 0
    o0 = OB // 256
    n2 = (nt + 1) // 2
    for k in range(n2):
        if 2 * k + 1 < nt:
            a(f"ds_read2st64_b32 v[{8+2*k}:{9+2*k}], v17 offset0:{o0+16*k+8*s0} offset1:{o0+16*k+8+8*s0}")
        else:
            a(f"ds_read_b32 v{8+2*k}, v17 offset:{OB+2048*2*k}")
    a("s_waitcnt lgkmcnt(0)")
    vals = list(range(8, 8 + nt))
    while len(vals) > 1:
        nxt = []
        for k in range(0, len(vals) - 1, 2):
            a(f"v_add_f32 v{vals[k]}, v{vals[k]}, v{vals[k+1]}")
            nxt.append(vals[k])
        if len(vals) % 2: nxt.append(vals[-1])
        vals = nxt
    a("v_min_u32 v8, -2, v8")
    a("global_store_dword v17, v8, s[56:57] sc1")

def final_pre():
    a("s_min_u32 s35, s31, 1")
    a("s_lshl_b32 s45, s30, 1")
    a("s_add_u32 s45, s45, s35")
    a("s_min_u32 s45, s45, 13")
    a("v_and_b32 v20, 31, v0")
    a("s_lshl_b32 s35, s45, 5")
    a("v_add_u32 v20, s35, v20")
    a("v_lshlrev_b32 v20, 1, v20")
    a("s_lshl_b32 s35, s45, 14")
    a("s_lshl_b32 s45, s3, 11")
    a("s_add_u32 s35, s35, s45")
    a(f"s_add_u32 s35, s35, {WS_F}")
    base_add(52, 28, "s35")
    a("s_lshl_b32 s35, s3, 6")
    a(f"s_add_u32 s35, s35, {WS_R2}")
    base_add(48, 28, "s35")
def final_gather():
    a("s_cmp_lt_u32 s31, 2")
    a(f"s_cbranch_scc0 L_fin")
    a("s_cmp_lt_u32 s30, 7")
    a(f"s_cbranch_scc0 L_fin")
    a("v_lshlrev_b32 v3, 4, v0")
    a("v_and_b32 v24, 15, v0")
    a("v_lshlrev_b32 v24, 2, v24")
    a("v_and_b32 v25, 7, v0")
    a("v_lshlrev_b32 v25, 4, v25")
    a("v_lshrrev_b32 v26, 4, v0")
    a("v_lshl_add_u32 v25, v26, 2, v25")
    a("s_lshl_b32 s35, s3, 7")
    a("v_add_u32 v25, s35, v25")
    light(lambda: a(f"global_load_dword v48, v24, s[48:49] sc1"), lambda: a(f"v_cmp_ne_u32 vcc, s34, v48"), done_if_nz=False, slp=0)
    def f_issue2():
        a(f"global_load_dwordx4 v[40:43], v3, s[52:53] sc1")
        a(f"global_load_dwordx4 v[44:47], v3, s[52:53] offset:1024 sc1")
    def f_check2():
        a(f"v_max3_u32 v50, v40, v41, v42")
        a(f"v_max3_u32 v51, v43, v44, v45")
        a(f"v_max3_u32 v50, v50, v46, v47")
        a("v_max_u32 v50, v50, v51")
        a("v_cmp_eq_u32 vcc, -1, v50")
    pollm(f_issue2, f_check2)
    for k in range(4): a(f"v_add_f32 v{40+k}, v{40+k}, v{44+k}")
    a("v_permlane32_swap_b32 v40, v42")
    a("v_permlane32_swap_b32 v41, v43")
    a("v_add_f32 v40, v40, v42")
    a("v_add_f32 v41, v41, v43")
    a("v_permlane16_swap_b32 v40, v41")
    a("v_add_f32 v40, v40, v41")
    a(f"v_add_f32_dpp v40, v40, v40 row_ror:8 row_mask:0xf bank_mask:0xf")
    a(f"ds_write_b32 v25, v40 offset:{FIN}")
    barrier()

a("L_X:")
a("s_mul_i32 s35, s31, 7")
a("s_add_u32 s35, s35, s3")
tile_off()
k_voff()
a("s_waitcnt lgkmcnt(0)")
tile_bases()
if not XD: k_loads()
load_tag()
prof_zero()
tile_pre()
gather_pre()
final_pre()
a("s_waitcnt lgkmcnt(0)")
make_tag()
if XD:
    a("s_barrier")
    k_loads()
a("s_barrier")
if KW < 8: a(f"s_waitcnt vmcnt({KW})")
v_loads(0, VA)
sq_issue()
v_loads(VA, 8)
stamp(1)
sq_finish()
tile_main()
barrier()
combine(7)
stamp(5)
final_gather()
a("s_branch L_fin")

def gemv_loads(ptr, row_sgpr, dst):
    a(f"s_mul_i32 s35, {row_sgpr}, 896")
    a("s_lshl_b32 s45, s3, 7")
    a("s_add_u32 s35, s35, s45")
    base_add(38, ptr, "s35")
    a("v_lshrrev_b32 v6, 3, v0")
    a("v_mul_u32_u24 v6, 3584, v6")
    a("v_and_b32 v7, 7, v0")
    a("v_lshl_add_u32 v6, v7, 4, v6")
    for i in range(4):
        a(f"global_load_dwordx4 v[{dst+4*i}:{dst+4*i+3}], v6, s[38:39] offset:{896*i} nt")
def publish_final_addr():
    a("s_lshl_b32 s35, s30, 4")
    a("s_add_u32 s35, s35, s31")
    a("s_sub_u32 s35, s35, 16")
    a("s_lshl_b32 s35, s35, 7")
    a("s_lshl_b32 s45, s3, 15")
    a("s_add_u32 s35, s35, s45")
    a(f"s_add_u32 s35, s35, {WS_F}")
    base_add(36, 28, "s35")
    a("v_bfe_u32 v6, v0, 2, 1")
    a("v_lshlrev_b32 v6, 14, v6")
    a("v_and_b32 v7, 3, v0")
    a("v_lshl_add_u32 v6, v7, 5, v6")
    a("v_lshrrev_b32 v7, 4, v0")
    a("v_lshl_add_u32 v6, v7, 3, v6")
def publish_final_store(acc):
    a(f"v_min_u32 v{acc}, -2, v{acc}")
    a(f"v_min_u32 v{acc+1}, -2, v{acc+1}")
    a("s_mov_b32 exec_lo, 0x00ff00ff")
    a("s_mov_b32 exec_hi, 0x00ff00ff")
    a(f"global_store_dwordx2 v6, v[{acc}:{acc+1}], s[36:37] sc1")
    a("s_mov_b64 exec, -1")
def wo_loads64(ptr, dst):
    a("s_lshl_b32 s48, s30, 9")
    a("s_sub_u32 s49, s31, 16")
    a("s_lshl_b32 s49, s49, 6")
    a("s_add_u32 s48, s48, s49")
    a(f"s_mul_i32 s35, s48, 896")
    a("s_lshl_b32 s45, s3, 7")
    a("s_add_u32 s35, s35, s45")
    base_add(38, ptr, "s35")
    base_add(60, 38, 3584)
    a("v_lshrrev_b32 v6, 3, v0")
    a("v_mul_u32_u24 v6, 7168, v6")
    a("v_and_b32 v7, 7, v0")
    a("v_lshl_add_u32 v6, v7, 4, v6")
    for i in range(8):
        b = 38 if i < 4 else 60
        a(f"global_load_dwordx4 v[{dst+4*i}:{dst+4*i+3}], v6, s[{b}:{b+1}] offset:{896*(i%4)} nt")

a("L_Yq:")
a("L_Ym:")
a("L_Ys:")
a("s_sub_u32 s46, s31, 16")
a("s_lshr_b32 s47, s46, 3")
a("s_mul_i32 s48, s47, 224")
a("s_lshl_b32 s45, s3, 5")
a("s_add_u32 s48, s48, s45")
a("s_lshl_b32 s35, s48, 13")
a("s_lshl_b32 s45, s30, 10")
a("s_add_u32 s35, s35, s45")
a("s_and_b32 s45, s46, 7")
a("s_lshl_b32 s45, s45, 7")
a("s_add_u32 s35, s35, s45")
a("v_lshrrev_b32 v6, 3, v0")
a("v_lshlrev_b32 v9, 3, v6")
a("v_lshlrev_b32 v6, 15, v6")
a("v_and_b32 v7, 7, v0")
a("v_lshl_add_u32 v6, v7, 4, v6")
a("s_waitcnt lgkmcnt(0)")
base_add(36, 10, "s35")
a("s_barrier")
for i in range(4):
    a(f"global_load_dwordx4 v[{96+4*i}:{99+4*i}], v6, s[36:37] nt")
    if i < 3: base_add(36, 36, 8192)
load_tag()
prof_zero()
a("s_lshl_b32 s35, s48, 1")
a("v_add_u32 v9, s35, v9")
a("v_and_b32 v7, 7, v0")
a("v_lshlrev_b32 v7, 5, v7")
a("v_lshrrev_b32 v8, 4, v0")
a("v_lshl_add_u32 v7, v8, 3, v7")
a("s_lshl_b32 s35, s3, 8")
a("v_add_u32 v7, s35, v7")
k_voff()
a("s_and_b32 s35, s46, 7")
a("s_lshl_b32 s35, s35, 1")
a("s_min_u32 s45, s3, 1")
a("s_add_u32 s35, s35, s45")
a("s_add_u32 s35, s35, 112")
tile_off()
tile_bases()
a("s_mov_b64 s[6:7], s[12:13]")
gather_pre()
a("s_waitcnt lgkmcnt(0)")
make_tag()
barrier()
a(f"ds_read_b64 v[28:29], v9 offset:{XB}")
for k in range(2):
    a(f"s_waitcnt vmcnt({2-2*k}) lgkmcnt(0)")
    t = 112 + 8 * k
    preperm(96 + 8 * k, 100 + 8 * k, t)
    dots(20, t, f"v{28+k}", first=(k == 0))
reduce_hi(20, [8])
a(f"ds_write_b64 v7, v[20:21] offset:{PART}")
stamp(1)
barrier()
a("s_cmp_lt_u32 s31, 24")
a("s_cbranch_scc0 L_Ym2")
a("s_cmp_lt_u32 s3, 2")
a("s_cbranch_scc0 L_Yq_notile")
tile_pre()
a("s_barrier")
k_loads()
v_loads(0, 8)
sq_issue()
sq_finish()
tile_main(lambda: wo_loads64(6, 96), 8, ptmp=(56, 56), stmp=56)
a("s_branch L_Yq_comb")
a("L_Yq_notile:")
a("s_barrier")
wo_loads64(6, 96)
sq_issue()
sq_finish()
barrier()
a("L_Yq_comb:")
barrier()
combine(2)
a("s_waitcnt vmcnt(0)")
for k in range(4):
    preperm(96 + 8 * k, 100 + 8 * k, 32 + 8 * k)
publish_final_addr()
a("v_lshrrev_b32 v8, 3, v0")
a("v_lshlrev_b32 v8, 4, v8")
stamp(5)
barrier()
a(f"ds_read_b128 v[12:15], v8 offset:{OPAIR}")
a("s_waitcnt lgkmcnt(0)")
for k in range(4):
    dots(20, 32 + 8 * k, f"v{12+k}", first=(k == 0))
reduce_hi(20, [8])
publish_final_store(20)
stamp(6)
a("s_branch L_fin")
a("L_Ym2:")
a("s_cmp_eq_u32 s31, 31")
a("s_cbranch_scc1 L_fin")
a("s_mul_i32 s46, s30, 7")
a("s_add_u32 s46, s46, s31")
a("s_sub_u32 s46, s46, 24")
a("s_mul_i32 s35, s3, 229376")
a("s_lshl_b32 s45, s46, 6")
a("s_add_u32 s35, s35, s45")
a("v_lshrrev_b32 v10, 2, v0")
a("v_mul_u32_u24 v10, 14336, v10")
a("v_and_b32 v7, 3, v0")
a("v_lshl_add_u32 v10, v7, 4, v10")
base_add(36, 16, "s35")
a("v_lshrrev_b32 v9, 2, v0")
a("v_lshlrev_b32 v9, 3, v9")
a("s_lshl_b32 s35, s3, 7")
a("v_add_u32 v9, s35, v9")
a("v_and_b32 v7, 3, v0")
a("v_lshlrev_b32 v7, 5, v7")
a("v_lshrrev_b32 v8, 4, v0")
a("v_lshl_add_u32 v7, v8, 3, v7")
a("v_add_u32 v12, s35, v7")
barrier()
for i in range(4):
    a(f"global_load_dwordx4 v[{64+4*i}:{67+4*i}], v10, s[36:37] offset:{3584*(i%2)} nt")
    if i == 1: base_add(36, 36, 7168)
a(f"ds_read_b64 v[28:29], v9 offset:{YB}")
a("s_barrier")
a("s_lshl_b32 s46, s46, 5")
gemv_loads(20, "s46", 32)
for k in range(2):
    a(f"s_waitcnt vmcnt({6-2*k}) lgkmcnt(0)")
    t = 96 + 8 * k
    preperm(64 + 8 * k, 68 + 8 * k, t)
    dots(20, t, f"v{28+k}", first=(k == 0))
reduce_hi(20, [8, 4])
a(f"ds_write_b64 v12, v[20:21] offset:{PART}")
a("v_lshrrev_b32 v8, 3, v0")
a("v_lshlrev_b32 v8, 3, v8")
barrier()
a("s_waitcnt vmcnt(0)")
preperm(32, 36, 112)
preperm(40, 44, 120)
publish_final_addr()
stamp(5)
barrier()
a(f"ds_read_b64 v[10:11], v8 offset:{HB}")
a("s_waitcnt lgkmcnt(0)")
dots(20, 112, "v10", first=True)
dots(20, 120, "v11")
reduce_hi(20, [8])
publish_final_store(20)
stamp(6)
a("s_branch L_fin")

a("L_service:")
a("v_lshlrev_b32 v2, 4, v0")
a("v_mov_b32 v3, 0")
for k in range(4): a(f"v_mov_b32 v{4+k}, -1")
for k in range(4): a(f"v_mov_b32 v{8+k}, 0")
a("s_waitcnt lgkmcnt(0)")
a("s_cmp_lt_u32 s31, 16")
a("s_cbranch_scc1 L_sv_nox")
a("s_mov_b32 exec_hi, 0x00ffffff")
a("global_load_dwordx4 v[8:11], v2, s[4:5]")
a("s_mov_b32 exec_hi, -1")
a("s_barrier")
a("L_sv_nox:")
load_tag()
prof_zero()
gather_pre()
a("s_cmp_lt_u32 s31, 24")
a("s_cbranch_scc0 L_sv_noo")
a("global_store_dwordx4 v2, v[4:7], s[56:57] sc1")
a("global_store_dwordx4 v2, v[4:7], s[56:57] offset:1024 sc1")
a("L_sv_noo:")
a("s_lshl_b32 s35, s30, 4")
a("s_add_u32 s35, s35, s31")
a("s_max_u32 s35, s35, 16")
a("s_sub_u32 s47, s35, 16")
a("s_cmp_lt_u32 s31, 16")
a("s_cbranch_scc1 L_sv_nof")
a("s_lshl_b32 s35, s47, 7")
a(f"s_add_u32 s35, s35, {WS_F}")
base_add(36, 28, "s35")
base_add(38, 36, 8 * 16384)
a("v_lshrrev_b32 v13, 3, v0")
a("v_lshlrev_b32 v13, 14, v13")
a("v_and_b32 v14, 7, v0")
a("v_lshl_add_u32 v13, v14, 4, v13")
a("s_cmp_eq_u32 s31, 31")
a("s_cselect_b32 s35, 0, -1")
for k in range(4): a(f"v_mov_b32 v{4+k}, s35")
a("global_store_dwordx4 v13, v[4:7], s[36:37] sc1")
a("s_mov_b32 exec_hi, 0x0000ffff")
a("global_store_dwordx4 v13, v[4:7], s[38:39] sc1")
a("s_mov_b32 exec_hi, -1")
a("L_sv_nof:")
a("v_lshlrev_b32 v13, 3, v0")
a("v_mov_b32 v14, 0"); a("v_mov_b32 v15, 0")
a(f"ds_write_b64 v13, v[14:15] offset:{ZR}")
a("v_lshlrev_b32 v13, 2, v0")
a("v_mov_b32 v16, 0xff800000")
a("v_cmp_gt_u32 vcc, 16, v0")
a("v_cndmask_b32 v16, v14, v16, vcc")
a("s_mov_b32 exec_hi, 0")
a(f"ds_write_b32 v13, v16 offset:{SMAX}")
a("s_mov_b64 exec, -1")
a("s_lshl_b32 s35, s47, 2")
a(f"s_add_u32 s35, s35, {WS_R2}")
base_add(38, 28, "s35")
a("s_lshl_b32 s35, s30, 7")
a(f"s_add_u32 s35, s35, {WS_R1}")
base_add(40, 28, "s35")
a("s_lshl_b32 s35, s30, 10")
a("s_lshl_b32 s45, s31, 4")
a("s_add_u32 s35, s35, s45")
a(f"s_add_u32 s35, s35, {WS_S}")
base_add(42, 28, "s35")
a("v_and_b32 v36, 1, v0")
a("v_lshlrev_b32 v37, 9, v36")
a("v_lshlrev_b32 v36, 5, v36")
a("s_waitcnt lgkmcnt(0)")
make_tag()

def flags_store(r1, r2):
    a("v_mov_b32 v14, s34")
    a("s_lshl_b32 s35, s31, 2")
    a("v_mov_b32 v13, s35")
    a("s_mov_b64 exec, 1")
    if r1: a("global_store_dword v13, v14, s[40:41] sc1")
    if r2: a("global_store_dword v3, v14, s[38:39] sc1")
    a("s_mov_b64 exec, -1")
def stats_publish():
    a(f"ds_read_b128 v[20:23], v36 offset:{SMAX}")
    a(f"ds_read_b128 v[24:27], v36 offset:{SMAX+16}")
    a(f"ds_read_b128 v[28:31], v36 offset:{LSUM}")
    a(f"ds_read_b128 v[32:35], v36 offset:{LSUM+16}")
    a("s_waitcnt lgkmcnt(0)")
    a("v_max3_f32 v40, v20, v21, v22")
    a("v_max3_f32 v23, v23, v24, v25")
    a("v_add_f32 v28, v28, v29"); a("v_add_f32 v30, v30, v31"); a("v_add_f32 v32, v32, v33"); a("v_add_f32 v34, v34, v35")
    a("v_max3_f32 v40, v40, v26, v27")
    a("v_add_f32 v28, v28, v30"); a("v_add_f32 v32, v32, v34")
    a("v_max_f32 v40, v40, v23")
    a("v_add_f32 v42, v28, v32")
    a("v_mov_b32 v41, s34")
    a("v_mov_b32 v43, s34")
    a("s_mov_b64 exec, 3")
    a("global_store_dwordx4 v37, v[40:43], s[42:43] sc1")
    a("s_mov_b64 exec, -1")
def o_gather_pre():
    a("s_lshl_b32 s35, s30, 16")
    a("s_sub_u32 s45, s31, 16")
    a("s_lshl_b32 s46, s45, 8")
    a("s_add_u32 s35, s35, s46")
    a(f"s_add_u32 s35, s35, {WS_O}")
    base_add(60, 28, "s35")
    base_add(46, 60, 16384)
    base_add(48, 60, 32768)
    a("s_lshl_b32 s35, s30, 10")
    a("s_lshr_b32 s45, s45, 2")
    a("s_lshl_b32 s45, s45, 9")
    a("s_add_u32 s35, s35, s45")
    a(f"s_add_u32 s35, s35, {WS_S}")
    base_add(52, 28, "s35")
    a("v_and_b32 v100, 7, v0")
    a("v_lshlrev_b32 v101, 4, v100")
    a("v_lshlrev_b32 v100, 11, v100")
    a("v_lshrrev_b32 v102, 3, v0")
    a("v_lshl_add_u32 v100, v102, 5, v100")
    a("v_lshlrev_b32 v102, 4, v102")
    a("v_min_u32 v103, 23, v0")
    a("v_lshlrev_b32 v103, 2, v103")
def o_gather(lt):
    b = 40
    light(lambda: a("global_load_dword v81, v103, s[40:41] sc1"), lambda: a("v_cmp_ne_u32 vcc, s34, v81"), done_if_nz=False)
    stamp(6)
    def issue():
        for i in range(3):
            a(f"global_load_dwordx4 v[{b+24+4*i}:{b+27+4*i}], v101, s[52:53] offset:{128*i} sc1")
        for i, sb in enumerate((60, 46, 48)):
            a(f"global_load_dwordx4 v[{b+8*i}:{b+8*i+3}], v100, s[{sb}:{sb+1}] sc1")
            a(f"global_load_dwordx4 v[{b+8*i+4}:{b+8*i+7}], v100, s[{sb}:{sb+1}] offset:16 sc1")
    def check():
        for k in range(8):
            a(f"v_max3_u32 v{88+k}, v{b+3*k}, v{b+3*k+1}, v{b+3*k+2}")
        for i in range(6):
            a(f"v_xor_b32 v{80+i}, s34, v{b+25+2*i}")
        a("v_max3_u32 v88, v88, v89, v90")
        a("v_max3_u32 v91, v91, v92, v93")
        a("v_or3_b32 v80, v80, v81, v82")
        a("v_or3_b32 v83, v83, v84, v85")
        a("v_max3_u32 v88, v88, v94, v95")
        a("v_or_b32 v80, v80, v83")
        a("v_max_u32 v88, v88, v91")
        a("v_cmp_ne_u32 s[54:55], 0, v80")
        a("v_cmp_eq_u32 vcc, -1, v88")
        a("s_or_b64 vcc, vcc, s[54:55]")
    pollm(issue, check)
    stamp(4)
    m = [b + 24, b + 28, b + 32]; l = [b + 26, b + 30, b + 34]
    a(f"v_max3_f32 v80, v{m[0]}, v{m[1]}, v{m[2]}")
    for pat in ["quad_perm:[1,0,3,2]", "quad_perm:[2,3,0,1]", "row_half_mirror"]:
        a(f"v_max_f32_dpp v80, v80, v80 {pat} row_mask:0xf bank_mask:0xf")
    for i in range(3): a(f"v_sub_f32 v{81+i}, v{m[i]}, v80")
    for i in range(3): a(f"v_mul_f32 v{81+i}, {hex(f2u(CEXP))}, v{81+i}")
    for i in range(3): a(f"v_exp_f32 v{81+i}, v{81+i}")
    a(f"v_mul_f32 v85, v81, v{l[0]}")
    for k in range(8): a(f"v_mul_f32 v{86+k}, v81, v{b+k}")
    a(f"v_fmac_f32 v85, v82, v{l[1]}")
    for k in range(8): a(f"v_fmac_f32 v{86+k}, v82, v{b+8+k}")
    a(f"v_fmac_f32 v85, v83, v{l[2]}")
    for k in range(8): a(f"v_fmac_f32 v{86+k}, v83, v{b+16+k}")
    for pat in ["quad_perm:[1,0,3,2]", "quad_perm:[2,3,0,1]", "row_half_mirror"]:
        for r in range(85, 94):
            a(f"v_add_f32_dpp v{r}, v{r}, v{r} {pat} row_mask:0xf bank_mask:0xf")
    a("v_rcp_f32 v85, v85")
    for k in range(8): a(f"v_mul_f32 v{86+k}, v{86+k}, v85")
    for k in range(4): a(f"v_cvt_pk_bf16_f32 v{96+k}, v{86+2*k}, v{87+2*k}")
    a(f"ds_write_b128 v102, v[96:99] offset:{OPAIR}")
    barrier()
def sum7(stride):
    for w in range(7):
        a(f"ds_read_b64 v[{20+2*w}:{21+2*w}], v13 offset:{PART+stride*w}")
    a("s_waitcnt lgkmcnt(0)")
    for k in range(2):
        a(f"v_add_f32 v{20+k}, v{20+k}, v{22+k}")
        a(f"v_add_f32 v{24+k}, v{24+k}, v{26+k}")
        a(f"v_add_f32 v{28+k}, v{28+k}, v{30+k}")
    for k in range(2):
        a(f"v_add_f32 v{20+k}, v{20+k}, v{24+k}")
        a(f"v_add_f32 v{28+k}, v{28+k}, v{32+k}")
    for k in range(2):
        a(f"v_add_f32 v{20+k}, v{20+k}, v{28+k}")

a("s_cmp_lt_u32 s31, 16")
a("s_cbranch_scc1 L_svX")
a("s_branch L_svY")

a("L_svX:")
final_pre()
a("global_load_ushort v104, v20, s[4:5]")
a("global_load_ushort v105, v20, s[22:23]")
a("v_mov_b32 v106, v20")
a("s_mov_b64 s[6:7], s[24:25]")
if XD:
    a("s_waitcnt vmcnt(0)")
    a("s_barrier")
a("s_barrier")
stamp(1)
sq_issue()
sq_finish()
a("s_waitcnt vmcnt(0)")
flags_store(True, False)
barrier()
barrier()
combine(7)
stats_publish()
stamp(5)
final_gather()
a("v_and_b32 v26, 31, v0")
a("v_lshlrev_b32 v26, 2, v26")
for k in range(8):
    a(f"ds_read_b32 v{80+k}, v26 offset:{FIN+128*k}")
a("v_lshlrev_b32 v104, 16, v104")
a("v_lshlrev_b32 v105, 16, v105")
a("v_add_f32 v104, v104, v105")
a("s_waitcnt lgkmcnt(0)")
for k in range(4): a(f"v_add_f32 v{80+2*k}, v{80+2*k}, v{81+2*k}")
a("v_add_f32 v80, v80, v82")
a("v_add_f32 v84, v84, v86")
a("v_add_f32 v80, v80, v84")
a("v_add_f32 v80, v80, v104")
a("v_cvt_pk_bf16_f32 v80, v80, v80")
a("s_mov_b32 exec_hi, 0")
a("global_store_short v106, v80, s[6:7]")
a("s_mov_b64 exec, -1")
a("s_cmp_eq_u32 s2, 0")
a("s_cbranch_scc0 L_fin")
a("v_mov_b32 v14, s34")
a("v_mov_b32 v13, 0")
a("s_mov_b64 exec, 1")
a("global_store_dword v13, v14, s[28:29] sc1")
a("s_mov_b64 exec, -1")
a("s_branch L_fin")

a("L_svY:")
a("s_mul_i32 s46, s30, 7")
a("s_max_u32 s47, s31, 24")
a("s_min_u32 s47, s47, 30")
a("s_add_u32 s46, s46, s47")
a("s_sub_u32 s46, s46, 24")
a("s_lshl_b32 s35, s46, 6")
a("v_and_b32 v13, 15, v0")
a("v_lshlrev_b32 v13, 2, v13")
a("v_add_u32 v13, s35, v13")
a("global_load_dword v44, v13, s[18:19]")
a("s_cmp_lt_u32 s31, 24")
a("s_cbranch_scc1 L_svY_a")
a("s_waitcnt vmcnt(3)")
a("s_branch L_svY_b")
a("L_svY_a:")
a("s_waitcnt vmcnt(5)")
a("L_svY_b:")
layernorm(8, 20, 28)
a("s_mov_b32 exec_hi, 0x00ffffff")
a(f"ds_write_b128 v2, v[8:11] offset:{XB}")
a("s_mov_b32 exec_hi, -1")
stamp(1)
barrier()
a("v_and_b32 v13, 31, v0")
a("v_lshlrev_b32 v45, 4, v13")
a("v_lshlrev_b32 v13, 3, v13")
a("s_sub_u32 s35, s31, 16")
a("s_and_b32 s47, s35, 7")
a("s_lshl_b32 s35, s47, 9")
a("s_lshl_b32 s45, s30, 12")
a("s_add_u32 s35, s35, s45")
a(f"s_add_u32 s35, s35, {WS_P}")
base_add(54, 28, "s35")
a("s_cmp_lt_u32 s31, 24")
a("s_cbranch_scc1 L_sv_recv")
layernorm(8, 20, 28)
a("s_mov_b32 exec_hi, 0x00ffffff")
a(f"ds_write_b128 v2, v[8:11] offset:{YB}")
a("s_mov_b32 exec_hi, -1")
a("s_waitcnt vmcnt(0)")
barrier()
sum7(256)
a("v_mov_b32 v22, v21")
a("v_mov_b32 v21, s34")
a("v_mov_b32 v23, s34")
a("s_mov_b32 exec_hi, 0")
a("global_store_dwordx4 v45, v[20:23], s[54:55] sc1")
a("s_mov_b32 exec_hi, -1")
flags_store(False, True)
stamp(2)
a("s_cmp_eq_u32 s31, 31")
a("s_cbranch_scc1 L_fin")
barrier()
a("s_barrier")
a("v_and_b32 v13, 15, v0")
a("v_lshlrev_b32 v14, 2, v13")
a("v_lshlrev_b32 v13, 3, v13")
barrier()
sum7(128)
a("v_cvt_pk_bf16_f32 v18, v20, v21")
a("v_lshlrev_b32 v16, 16, v18")
a("v_and_b32 v17, 0xffff0000, v18")
a("v_lshlrev_b32 v18, 16, v44")
a("v_and_b32 v19, 0xffff0000, v44")
a("v_add_f32 v16, v16, v18")
a("v_add_f32 v17, v17, v19")
a("v_cvt_pk_bf16_f32 v18, v16, v17")
a("v_lshlrev_b32 v16, 16, v18")
a("v_and_b32 v17, 0xffff0000, v18")
K0 = math.sqrt(2.0 / math.pi); K1 = 0.044715
c1 = -2.0 * K0 * math.log2(math.e); c3 = c1 * K1
a(f"v_mov_b32 v22, {hex(f2u(c1))}")
for k in range(2): a(f"v_mul_f32 v{18+k}, v{16+k}, v{16+k}")
for k in range(2): a(f"v_fmamk_f32 v{18+k}, v{18+k}, {hex(f2u(c3))}, v22")
for k in range(2): a(f"v_mul_f32 v{18+k}, v{18+k}, v{16+k}")
for k in range(2): a(f"v_exp_f32 v{18+k}, v{18+k}")
for k in range(2): a(f"v_add_f32 v{18+k}, 1.0, v{18+k}")
for k in range(2): a(f"v_rcp_f32 v{18+k}, v{18+k}")
for k in range(2): a(f"v_mul_f32 v{16+k}, v{16+k}, v{18+k}")
a("v_cvt_pk_bf16_f32 v16, v16, v17")
a(f"ds_write_b32 v14, v16 offset:{HB}")
stamp(3)
barrier()
a("s_branch L_fin")
a("L_sv_recv:")
a("v_and_b32 v14, 15, v0")
a("v_mul_u32_u24 v12, 12, v14")
a("v_lshlrev_b32 v15, 4, v14")
a("v_lshrrev_b32 v14, 4, v0")
a("v_lshl_add_u32 v15, v14, 11, v15")
a("s_mul_i32 s35, s47, 192")
a("s_lshl_b32 s45, s30, 16")
a("s_add_u32 s35, s35, s45")
a(f"s_add_u32 s35, s35, {WS_Q}")
base_add(36, 28, "s35")
a("v_mov_b32 v43, s34")
o_gather_pre()
a("s_waitcnt vmcnt(0)")
barrier()
a("global_load_dwordx4 v[48:51], v45, s[54:55] sc1")
sum7(256)
lp = a.newlabel("L_px"); dn = a.newlabel("L_pxd")
a.label(lp)
a("s_waitcnt vmcnt(0)")
a("v_xor_b32 v34, s34, v49")
a("v_xor_b32 v35, s34, v51")
a("v_or_b32 v34, v34, v35")
a("v_cmp_ne_u32 vcc, 0, v34")
a(f"s_cbranch_vccz {dn}")
a("global_load_dwordx4 v[48:51], v45, s[54:55] sc1")
guard(lp)
a("s_waitcnt vmcnt(0)")
a.label(dn)
a("v_add_f32 v20, v20, v48")
a("v_add_f32 v21, v21, v50")
a("v_cvt_pk_bf16_f32 v30, v20, v21")
for k in range(3):
    a(f"ds_bpermute_b32 v{40+k}, v12, v30 offset:{4*k}")
a("s_mov_b32 exec_lo, 0x07ff07ff")
a("s_mov_b32 exec_hi, 0x07ff07ff")
a("s_waitcnt lgkmcnt(0)")
for k in range(6):
    a("global_store_dwordx4 v15, v[40:43], s[36:37] sc1")
    if k < 5: base_add(36, 36, 8192)
a("s_mov_b64 exec, -1")
flags_store(True, True)
a("s_barrier")
stamp(2)
sq_issue()
sq_finish()
barrier()
barrier()
combine(2)
stats_publish()
o_gather(True)

a("L_fin:")
if PROFILE:
    stamp(7)
    a("s_waitcnt lgkmcnt(0) vmcnt(0)")
    for k in range(8):
        a(f"v_mov_b32 v{16+k}, s{STM[k]}")
    a("s_lshl_b32 s35, s2, 3")
    a("s_add_u32 s35, s35, s3")
    a("s_lshl_b32 s35, s35, 6")
    a(f"s_add_u32 s35, s35, {WS_PROF}")
    base_add(60, 28, "s35")
    a("v_mov_b32 v13, 0")
    a("s_mov_b64 exec, 1")
    a("global_store_dwordx4 v13, v[16:19], s[60:61]")
    a("global_store_dwordx4 v13, v[20:23], s[60:61] offset:16")
a("L_end:")

open(OUT, "w").write(wrap(a.text(), 256, 512, LDS_BYTES, vgpr=128, sgpr=102))
print("wrote", OUT, len(a.lines), "lines")
```
